```python
import torch

def _softmax(x, axis=-1):
    return torch.softmax(x, dim=axis)
def _gelu(x):
    return torch.nn.functional.gelu(x, approximate="tanh")
def _silu(x):
    return torch.nn.functional.silu(x)
def _sigmoid(x):
    return torch.sigmoid(x)
def _layernorm(x, axis=-1, eps=1e-5):
    m = x.mean(dim=axis, keepdim=True)
    v = x.var(dim=axis, keepdim=True, unbiased=False)
    return (x - m) / torch.sqrt(v + eps)
def _scatter_add(tgt, idx, src, axis=0):
    return tgt.clone().index_add_(axis, idx, src)
def _segment_sum(src, seg, n):
    out = torch.zeros((n,) + src.shape[1:], dtype=src.dtype)
    return out.index_add_(0, seg, src)
def _pad(x, pw):
    flat = tuple(v for pair in reversed(pw) for v in pair)
    return torch.nn.functional.pad(x, flat)

kernel_name = 'standalone__self_sup_conv_stem_wavlm__speech'

def setup_inputs():

    _w = (lambda a: (lambda t: t.to(torch.bfloat16) if t.is_floating_point() else t)(torch.as_tensor(a)))
    B, T, D, K = 2, 16000, 256, 3
    scale = (K * D) ** -0.5
    return {
        "x": _w((lambda *s: torch.randn(*s, dtype=torch.bfloat16) * 0.05)(B, T, D)),
        "w": _w((lambda *s: torch.randn(*s, dtype=torch.bfloat16) * 0.05)(K, D, D) * scale),
        "gn_gamma": _w((lambda *s: torch.randn(*s, dtype=torch.bfloat16) * 0.05)(D) * 0.1 + 1.0),
        "gn_beta": _w((lambda *s: torch.randn(*s, dtype=torch.bfloat16) * 0.05)(D) * 0.1),
    }

def reference(x, w, gn_gamma, gn_beta):
    B, T, D = x.shape
    K = w.shape[0]
    s = 2
    L = (T - K) // s + 1
    h = torch.einsum('blc,cd->bld', x[:, 0:s * L:s, :], w[0])
    for i in range(1, K):
        h = h + torch.einsum('blc,cd->bld', x[:, i:i + s * L:s, :], w[i])
    mu = torch.einsum('bld->bd', h)[:, None, :] / L
    var = torch.einsum('bld->bd', (h - mu) ** 2)[:, None, :] / L
    h = (h - mu) / torch.sqrt(var + 1e-5)
    h = h * gn_gamma[None, None, :] + gn_beta[None, None, :]
    return _gelu(h)
```

```python
import sys
import struct

NAME = "standalone__self_sup_conv_stem_wavlm__speech"

HEADER = """; Kernarg layout for this problem (56 bytes, ptrs only, base s[0:1]):
"""


def f32bits(x):
    return struct.unpack("<I", struct.pack("<f", x))[0]


class Gen:
    def __init__(self, opts):
        self.o = opts
        self.L = []

    def __call__(self, s):
        self.L.append("    " + s)

    def lab(self, s):
        self.L.append(s + ":")

    def c(self, s):
        self.L.append("    ; " + s)


def build(opts):
    g = Gen(opts)
    xpol = opts.get("xpol", "nt")
    opol = opts.get("opol", "")
    stamps = opts.get("stamps", False)
    xp = (" " + xpol) if xpol else ""
    op = (" " + opol) if opol else ""

    SX, SW, SO, SG, SD, SGA, SBE = 20, 24, 28, 32, 36, 40, 44
    sXCD, sR, sQ, sPI, sB, sT, sWV = 50, 51, 52, 53, 54, 55, 56
    sXB, sOB, sLIM, sGRP = 57, 58, 59, 60
    sI, sT0, sT1, sT2, sT3 = 61, 62, 63, 64, 65
    sFI = 66
    sLX, sLW, sXO, sWO, sC = 67, 68, 69, 70, 71
    sSPIN = 72
    SST = 76
    sTS = 80

    def srd(base, lo, hi, nbytes):
        g(f"s_mov_b32 s{base}, s{lo}")
        g(f"s_and_b32 s{base+1}, s{hi}, 0xffff")
        g(f"s_mov_b32 s{base+2}, {nbytes}")
        g(f"s_mov_b32 s{base+3}, 0x00020000")

    nstamp = [0]

    def stamp(slot):
        if not stamps:
            return
        g(f"s_memrealtime s[{sTS}:{sTS+1}]")
        g("s_waitcnt lgkmcnt(0)")
        g(f"v_mov_b32 v128, s{sTS}")
        g(f"buffer_store_dword v128, v129, s[{SST}:{SST+3}], 0 offen offset:{slot*4}")

    g("s_cmp_ge_u32 s2, 256")
    g("s_cbranch_scc1 L_end")
    g("s_load_dwordx8 s[4:11], s[0:1], 0")
    g("s_load_dwordx4 s[12:15], s[0:1], 32")
    g("s_load_dwordx2 s[16:17], s[0:1], 48")
    g(f"s_and_b32 s{sXCD}, s2, 7")
    g(f"s_lshr_b32 s{sR}, s2, 3")
    g(f"s_and_b32 s{sQ}, s{sR}, 1")
    g(f"s_lshr_b32 s{sPI}, s{sR}, 1")
    g(f"s_lshl_b32 s{sPI}, s{sPI}, 3")
    g(f"s_add_u32 s{sPI}, s{sPI}, s{sXCD}")
    g(f"s_cmp_ge_u32 s{sPI}, 126")
    g("s_cbranch_scc1 L_end")
    g(f"s_cmp_ge_u32 s{sPI}, 63")
    g(f"s_cselect_b32 s{sB}, 1, 0")
    g(f"s_mul_i32 s{sT}, s{sB}, 63")
    g(f"s_sub_u32 s{sT}, s{sPI}, s{sT}")
    g("v_lshrrev_b32 v1, 6, v0")
    g("v_and_b32 v2, 63, v0")
    g(f"v_readfirstlane_b32 s{sWV}, v1")
    g(f"s_mul_i32 s{sXB}, s{sB}, 16000")
    g(f"s_mul_i32 s{sT0}, s{sT}, 254")
    g(f"s_add_u32 s{sXB}, s{sXB}, s{sT0}")
    g(f"s_lshl_b32 s{sXB}, s{sXB}, 9")
    g(f"s_mul_i32 s{sOB}, s{sB}, 7999")
    g(f"s_mul_i32 s{sT0}, s{sT}, 127")
    g(f"s_add_u32 s{sOB}, s{sOB}, s{sT0}")
    g(f"s_lshl_b32 s{sOB}, s{sOB}, 9")
    g(f"s_lshl_b32 s{sT1}, s{sQ}, 8")
    g(f"s_add_u32 s{sOB}, s{sOB}, s{sT1}")
    g(f"s_sub_u32 s{sLIM}, 7999, s{sT0}")
    g(f"s_min_u32 s{sLIM}, s{sLIM}, 127")
    g(f"s_lshl_b32 s{sGRP}, s{sB}, 1")
    g(f"s_add_u32 s{sGRP}, s{sGRP}, s{sQ}")
    g("s_waitcnt lgkmcnt(0)")
    srd(SX, 4, 5, 16384000)
    srd(SW, 6, 7, 393216)
    srd(SGA, 8, 9, 512)
    srd(SBE, 10, 11, 512)
    srd(SO, 12, 13, 8190976)
    srd(SD, 14, 15, 256)
    g(f"s_lshl_b32 s{sT0}, s{sGRP}, 16")
    g(f"s_add_u32 s{SG}, s16, s{sT0}")
    g(f"s_addc_u32 s{SG+1}, s17, 0")
    g(f"s_and_b32 s{SG+1}, s{SG+1}, 0xffff")
    g(f"s_mov_b32 s{SG+2}, {63*1024}")
    g(f"s_mov_b32 s{SG+3}, 0x00020000")
    if stamps:
        g(f"s_add_u32 s{SST}, s16, 0x100000")
        g(f"s_addc_u32 s{SST+1}, s17, 0")
        g(f"s_and_b32 s{SST+1}, s{SST+1}, 0xffff")
        g(f"s_mov_b32 s{SST+2}, 0x10000")
        g(f"s_mov_b32 s{SST+3}, 0x00020000")
        g(f"s_lshl_b32 s{sT0}, s2, 8")
        g(f"s_lshr_b32 s{sT1}, s{sWV}, 2")
        g(f"s_lshl_b32 s{sT1}, s{sT1}, 7")
        g(f"s_add_u32 s{sT0}, s{sT0}, s{sT1}")
        g(f"v_mov_b32 v129, s{sT0}")
        g("v_and_b32 v128, 0xff, v0")
        g("v_cmp_ne_u32 vcc, 0, v128")
        g("v_mov_b32 v128, 0x800000")
        g("s_nop 1")
        g("v_cndmask_b32 v129, v129, v128, vcc")
        stamp(0)
    g(f"s_cmp_ge_u32 s{sWV}, 4")
    g("s_cbranch_scc1 L_loader")

    vAa = [[16 + v * 4 + ks for ks in range(4)] for v in range(2)]
    vBa = [24, 25]
    FR = [32, 48]
    ACC = 64

    def T(mt, nt):
        return ACC + (mt * 2 + nt) * 16

    g.c("---- compute wave setup")
    g(f"s_mov_b32 s{sFI}, 99")
    g(f"s_cmp_lg_u32 s{sWV}, 0")
    g("s_cbranch_scc1 L_nosent")
    g(f"s_mov_b32 s{sFI}, 1")
    g(f"s_lshl_b32 s{sT0}, s{sT}, 10")
    g("v_lshlrev_b32 v3, 4, v2")
    g("v_mov_b32 v4, -1")
    g("v_mov_b32 v5, -1")
    g("v_mov_b32 v6, -1")
    g("v_mov_b32 v7, -1")
    g(f"buffer_store_dwordx4 v[4:7], v3, s[{SG}:{SG+3}], s{sT0} offen sc1")
    g.lab("L_nosent")
    g(f"s_lshr_b32 s{sT0}, s{sWV}, 1")
    g(f"s_and_b32 s{sT1}, s{sWV}, 1")
    g(f"s_lshl_b32 s{sT2}, s{sT0}, 6")
    g("v_and_b32 v3, 31, v2")
    g("v_lshrrev_b32 v8, 5, v2")
    g(f"v_add_u32 v9, s{sT2}, v3")
    for v in range(2):
        if v == 1:
            g("v_add_u32 v9, 1, v9")
        g("v_bfe_u32 v10, v9, 1, 3")
        g("v_xor_b32 v10, v10, v8")
        g("v_lshlrev_b32 v10, 4, v10")
        g(f"v_lshl_add_u32 v{vAa[v][0]}, v9, 7, v10")
        for ks in range(1, 4):
            g(f"v_xor_b32 v{vAa[v][ks]}, {ks*32}, v{vAa[v][0]}")
    g("v_bfe_u32 v9, v2, 2, 2")
    g("v_lshl_add_u32 v10, v8, 3, v9")
    g("v_lshlrev_b32 v10, 8, v10")
    g("v_bfe_u32 v11, v2, 4, 1")
    g("v_lshl_add_u32 v10, v11, 5, v10")
    g("v_and_b32 v11, 3, v2")
    g("v_lshl_add_u32 v10, v11, 3, v10")
    g(f"s_lshl_b32 s{sT2}, s{sT1}, 1")
    g(f"v_xor_b32 v11, s{sT2}, v9")
    g("v_lshl_add_u32 v10, v11, 6, v10")
    g(f"v_add_u32 v{vBa[0]}, 0x10000, v10")
    g(f"v_xor_b32 v{vBa[1]}, 64, v{vBa[0]}")
    for i in range(64):
        g(f"v_mov_b32 v{ACC+i}, 0")

    def reads(st, tap, ks):
        var = 1 if tap == 2 else 0
        pl = 1 if tap == 1 else 0
        f = FR[st]
        for mt in range(2):
            g(f"ds_read_b128 v[{f+mt*4}:{f+mt*4+3}], v{vAa[var][ks]} offset:{pl*16384+mt*4096}")
        for nt in range(2):
            for j in range(2):
                r = f + 8 + nt * 4 + j * 2
                g(f"ds_read_b64_tr_b16 v[{r}:{r+1}], v{vBa[nt]} offset:{tap*16384+ks*4096+j*1024}")

    def mfmas(st):
        f = FR[st]
        for mt in range(2):
            for nt in range(2):
                t = T(mt, nt)
                g(f"v_mfma_f32_32x32x16_bf16 v[{t}:{t+15}], v[{f+mt*4}:{f+mt*4+3}], v[{f+8+nt*4}:{f+8+nt*4+3}], v[{t}:{t+15}]")

    g(f"s_mov_b32 s{sI}, 0")
    g("s_barrier")
    stamp(1)
    reads(0, 0, 0)
    g.lab("L_loop")
    for tap in range(3):
        for ks in range(4):
            st = (tap * 4 + ks) & 1
            if ks < 3:
                reads(st ^ 1, tap, ks + 1)
                g("s_waitcnt lgkmcnt(6)")
            else:
                g("s_waitcnt lgkmcnt(0)")
                if tap == 2:
                    for v in range(2):
                        for k2 in range(4):
                            g(f"v_xor_b32 v{vAa[v][k2]}, 0x8000, v{vAa[v][k2]}")
                    for nt in range(2):
                        g(f"v_xor_b32 v{vBa[nt]}, 0xc000, v{vBa[nt]}")
                g("s_barrier")
                reads(st ^ 1, (tap + 1) % 3, 0)
            mfmas(st)
    g(f"s_add_u32 s{sI}, s{sI}, 1")
    g(f"s_cmp_lg_u32 s{sI}, s{sFI}")
    g("s_cbranch_scc1 L_noflag")
    g.c("sentinel has landed: tell the other workgroups of the group")
    g("s_waitcnt vmcnt(0)")
    g(f"s_and_b32 s{sT0}, s{sT}, 15")
    g(f"s_lshl_b32 s{sT1}, s{sGRP}, 4")
    g(f"s_add_u32 s{sT0}, s{sT0}, s{sT1}")
    g(f"s_lshl_b32 s{sT0}, s{sT0}, 2")
    g(f"v_mov_b32 v3, s{sT0}")
    g("v_mov_b32 v4, 1")
    g("s_mov_b64 exec, 1")
    g(f"buffer_atomic_add v4, v3, s[{SD}:{SD+3}], 0 offen")
    g("s_mov_b64 exec, -1")
    g.lab("L_noflag")
    g(f"s_cmp_lt_u32 s{sI}, 4")
    g("s_cbranch_scc1 L_loop")
    stamp(2)

    g.c("---- statistics")
    g("s_waitcnt lgkmcnt(0)")
    g(f"s_lshr_b32 s{sT0}, s{sWV}, 1")
    g(f"s_and_b32 s{sT1}, s{sWV}, 1")
    g(f"s_lshl_b32 s{sT2}, s{sT0}, 6")
    g(f"s_add_u32 s{sT2}, s{sT2}, 56")
    g(f"v_lshl_add_u32 v9, v8, 2, s{sT2}")
    g("s_nop 7")
    g("s_nop 7")
    for i in range(1, 4):
        g(f"v_add_u32 v10, {i}, v9")
        g(f"v_cmp_gt_u32 vcc, s{sLIM}, v10")
        g("s_nop 1")
        for nt in range(2):
            r = T(1, nt) + 12 + i
            g(f"v_cndmask_b32 v{r}, 0, v{r}, vcc")
    for nt in range(2):
        sa, sb, qa, qb = 32 + nt * 8, 34 + nt * 8, 36 + nt * 8, 38 + nt * 8
        prs = [T(mt, nt) + 2 * k for mt in range(2) for k in range(8)]
        g(f"v_pk_add_f32 v[{sa}:{sa+1}], v[{prs[0]}:{prs[0]+1}], v[{prs[2]}:{prs[2]+1}]")
        g(f"v_pk_add_f32 v[{sb}:{sb+1}], v[{prs[1]}:{prs[1]+1}], v[{prs[3]}:{prs[3]+1}]")
        g(f"v_pk_mul_f32 v[{qa}:{qa+1}], v[{prs[0]}:{prs[0]+1}], v[{prs[0]}:{prs[0]+1}]")
        g(f"v_pk_mul_f32 v[{qb}:{qb+1}], v[{prs[1]}:{prs[1]+1}], v[{prs[1]}:{prs[1]+1}]")
        for k in range(2, 16):
            p = prs[k]
            q = qa if k % 2 == 0 else qb
            s = sa if k % 2 == 0 else sb
            if k >= 4:
                g(f"v_pk_add_f32 v[{s}:{s+1}], v[{s}:{s+1}], v[{p}:{p+1}]")
            g(f"v_pk_fma_f32 v[{q}:{q+1}], v[{p}:{p+1}], v[{p}:{p+1}], v[{q}:{q+1}]")
        g(f"v_pk_add_f32 v[{sa}:{sa+1}], v[{sa}:{sa+1}], v[{sb}:{sb+1}]")
        g(f"v_pk_add_f32 v[{qa}:{qa+1}], v[{qa}:{qa+1}], v[{qb}:{qb+1}]")
    g("v_add_f32 v48, v32, v33")
    g("v_add_f32 v49, v40, v41")
    g("v_add_f32 v50, v36, v37")
    g("v_add_f32 v51, v44, v45")
    g("s_nop 1")
    g("v_permlane32_swap_b32 v48, v49")
    g("v_permlane32_swap_b32 v50, v51")
    g("s_nop 1")
    g("v_add_f32 v52, v48, v49")
    g("v_add_f32 v53, v50, v51")
    XCH = 65536
    g(f"s_lshl_b32 s{sT2}, s{sT1}, 9")
    g(f"v_lshl_add_u32 v10, v2, 3, s{sT2}")
    g(f"v_add_u32 v11, {XCH}, v10")
    g(f"s_cmp_eq_u32 s{sT0}, 0")
    g("s_cbranch_scc1 L_wm0a")
    g("ds_write_b64 v11, v[52:53]")
    g("s_waitcnt lgkmcnt(0)")
    g.lab("L_wm0a")
    g("s_barrier")
    g(f"s_cmp_lg_u32 s{sT0}, 0")
    g("s_cbranch_scc1 L_wm1b")
    g("ds_read_b64 v[54:55], v11")
    g(f"s_lshl_b32 s{sT2}, s{sT}, 10")
    g("v_mov_b32 v56, 0x7fc00000")
    g("s_waitcnt lgkmcnt(0)")
    g("v_pk_add_f32 v[52:53], v[52:53], v[54:55]")
    g("v_cmp_eq_u32 vcc, -1, v52")
    g("s_nop 1")
    g("v_cndmask_b32 v52, v52, v56, vcc")
    g("v_cmp_eq_u32 vcc, -1, v53")
    g("s_nop 1")
    g("v_cndmask_b32 v53, v53, v56, vcc")
    g(f"buffer_store_dwordx2 v[52:53], v10, s[{SG}:{SG+3}], s{sT2} offen sc1")
    g.lab("L_wm1b")
    stamp(3)
    g.c("---- transpose the accumulators through LDS (fp32, column-major, swizzled)")
    g("v_and_b32 v3, 31, v2")
    g("v_and_b32 v9, 7, v3")
    g("v_bfe_u32 v10, v3, 3, 2")
    g("v_lshlrev_b32 v10, 2, v10")
    g("v_xor_b32 v9, v9, v10")
    g("v_xor_b32 v9, v9, v8")
    g("v_lshlrev_b32 v9, 4, v9")
    g("v_lshl_add_u32 v9, v3, 8, v9")
    g(f"s_lshl_b32 s{sT2}, s{sWV}, 14")
    g(f"v_add_u32 v9, s{sT2}, v9")
    for mt in range(2):
        for gq in range(4):
            x = (2 * gq + 8 * mt) * 16
            if x:
                g(f"v_xor_b32 v10, {x}, v9")
                a = 10
            else:
                a = 9
            for nt in range(2):
                r = T(mt, nt) + gq * 4
                g(f"ds_write_b128 v{a}, v[{r}:{r+3}] offset:{nt*8192}")
    g("s_branch L_join")

    g.lab("L_loader")
    g(f"s_sub_u32 s{sT3}, s{sWV}, 4")
    g("v_lshrrev_b32 v3, 3, v2")
    g(f"s_lshl_b32 s{sT0}, s{sT3}, 3")
    g(f"v_add_u32 v3, s{sT0}, v3")
    g("v_lshlrev_b32 v3, 10, v3")
    g("v_lshrrev_b32 v4, 4, v2")
    g(f"s_and_b32 s{sT0}, s{sT3}, 1")
    g(f"s_lshl_b32 s{sT0}, s{sT0}, 2")
    g(f"v_xor_b32 v5, s{sT0}, v4")
    g("v_and_b32 v6, 7, v2")
    g("v_xor_b32 v5, v5, v6")
    g("v_lshl_add_u32 v16, v5, 4, v3")
    g(f"s_lshl_b32 s{sT0}, s{sT3}, 2")
    g(f"v_add_u32 v3, s{sT0}, v4")
    g("v_lshlrev_b32 v3, 9, v3")
    g("v_lshlrev_b32 v5, 2, v4")
    g("v_and_b32 v6, 15, v2")
    g("v_xor_b32 v5, v5, v6")
    g("v_lshl_add_u32 v3, v5, 4, v3")
    g(f"s_lshl_b32 s{sT0}, s{sQ}, 8")
    g(f"v_add_u32 v17, s{sT0}, v3")
    if opts.get("wpf", True):
        g(f"s_mul_i32 s{sT0}, s{sR}, 12288")
        g(f"s_mul_i32 s{sT1}, s{sT3}, 3072")
        g(f"s_add_u32 s{sT0}, s{sT0}, s{sT1}")
        g("v_lshlrev_b32 v3, 4, v2")
        for u in range(3):
            g(f"buffer_load_dwordx4 v[{32+4*u}:{35+4*u}], v3, s[{SW}:{SW+3}], s{sT0} offen offset:{u*1024}")
    g(f"s_lshl_b32 s{sLX}, s{sT3}, 10")
    g(f"s_add_u32 s{sLW}, s{sLX}, 0x10000")

    def chunk_setup(nreg_or_imm):
        if isinstance(nreg_or_imm, int):
            n = nreg_or_imm
            c0 = ((n & 1) << 1) | (n >> 1)
            g(f"s_lshl_b32 s{sC}, s{sQ}, 1")
            if c0:
                g(f"s_xor_b32 s{sC}, s{sC}, {c0}")
        else:
            n = nreg_or_imm
            g(f"s_and_b32 s{sC}, {n}, 1")
            g(f"s_xor_b32 s{sC}, s{sC}, s{sQ}")
            g(f"s_lshl_b32 s{sC}, s{sC}, 1")
            g(f"s_lshr_b32 s{sT0}, {n}, 1")
            g(f"s_or_b32 s{sC}, s{sC}, s{sT0}")
        g(f"s_lshl_b32 s{sXO}, s{sC}, 7")
        g(f"s_add_u32 s{sXO}, s{sXO}, s{sXB}")
        g(f"s_lshl_b32 s{sWO}, s{sC}, 15")

    def issue_x(pl):
        for j in range(4):
            g(f"s_add_u32 m0, s{sLX}, {pl*16384 + j*4096}")
            g(f"s_add_u32 s{sT0}, s{sXO}, {pl*512 + j*32768}")
            g(f"buffer_load_dwordx4 v16, s[{SX}:{SX+3}], s{sT0} offen{xp} lds")

    def issue_w(tap):
        for j in range(4):
            g(f"s_add_u32 m0, s{sLW}, {tap*16384 + j*4096}")
            g(f"s_add_u32 s{sT0}, s{sWO}, {tap*131072 + j*8192}")
            g(f"buffer_load_dwordx4 v17, s[{SW}:{SW+3}], s{sT0} offen lds")

    chunk_setup(0)
    issue_x(0)
    issue_x(1)
    for tap in range(3):
        issue_w(tap)
    g(f"s_mov_b32 s{sI}, 1")
    g.lab("L_lloop")
    chunk_setup(f"s{sI}")
    g(f"s_xor_b32 s{sLX}, s{sLX}, 0x8000")
    g(f"s_xor_b32 s{sLW}, s{sLW}, 0xc000")
    g("s_waitcnt vmcnt(8)")
    g("s_barrier")
    issue_x(0)
    g("s_waitcnt vmcnt(8)")
    g("s_barrier")
    issue_x(1)
    g("s_waitcnt vmcnt(8)")
    g("s_barrier")
    for tap in range(3):
        issue_w(tap)
    g(f"s_add_u32 s{sI}, s{sI}, 1")
    g(f"s_cmp_lt_u32 s{sI}, 4")
    g("s_cbranch_scc1 L_lloop")
    g("s_waitcnt vmcnt(8)")
    g("s_barrier")
    g("s_waitcnt vmcnt(4)")
    g("s_barrier")
    g("s_waitcnt vmcnt(0)")
    stamp(1)
    g("s_barrier")
    g.c("wave 4: wait until every workgroup of the group has armed its slot")
    g(f"s_cmp_lg_u32 s{sWV}, 4")
    g("s_cbranch_scc1 L_noflagwait")
    g(f"s_lshl_b32 s{sT0}, s{sGRP}, 6")
    g("v_and_b32 v3, 15, v2")
    g("v_cmp_eq_u32 vcc, 15, v3")
    g("v_mov_b32 v4, 4")
    g("v_mov_b32 v5, 3")
    g("v_cndmask_b32 v4, v4, v5, vcc")
    g(f"v_lshl_add_u32 v3, v3, 2, s{sT0}")
    g(f"s_mov_b32 s{sSPIN}, 0")
    g.lab("L_flagpoll")
    g(f"buffer_load_dword v5, v3, s[{SD}:{SD+3}], 0 offen sc1")
    g(f"s_add_u32 s{sSPIN}, s{sSPIN}, 1")
    g("s_waitcnt vmcnt(0)")
    g("v_cmp_ne_u32 vcc, v4, v5")
    g(f"s_cmp_ge_u32 s{sSPIN}, 0x8000")
    g("s_cbranch_scc1 L_noflagwait")
    g("s_cbranch_vccz L_noflagwait")
    g("s_sleep 2")
    g("s_branch L_flagpoll")
    g.lab("L_noflagwait")
    stamp(2)
    g("s_barrier")
    g("s_barrier")

    g.lab("L_join")
    g(f"s_lshl_b32 s{sT0}, s{sQ}, 8")
    g("v_lshlrev_b32 v3, 2, v2")
    g(f"buffer_load_dword v30, v3, s[{SGA}:{SGA+3}], s{sT0} offen")
    g(f"buffer_load_dword v31, v3, s[{SBE}:{SBE+3}], s{sT0} offen")
    g("s_waitcnt lgkmcnt(0)")
    g("s_barrier")
    GV = 96
    g(f"s_lshl_b32 s{sT0}, s{sWV}, 10")
    g(f"v_lshl_add_u32 v12, v2, 4, s{sT0}")
    g(f"s_mov_b32 s{sSPIN}, 0")

    def gather_loads():
        for k in range(8):
            g(f"s_mov_b32 s{sT1}, {k*8192}")
            g(f"buffer_load_dwordx4 v[{GV+4*k}:{GV+4*k+3}], v12, s[{SG}:{SG+3}], s{sT1} offen sc1")

    gather_loads()
    g(f"s_and_b32 s{sT0}, s{sWV}, 3")
    g(f"s_lshr_b32 s{sT1}, s{sWV}, 2")
    g("v_lshrrev_b32 v3, 3, v2")
    g(f"s_lshl_b32 s{sT2}, s{sT1}, 3")
    g(f"v_add_u32 v3, s{sT2}, v3")
    g("v_and_b32 v4, 7, v2")
    g("v_and_b32 v5, 3, v2")
    g("v_lshlrev_b32 v5, 2, v5")
    g("v_xor_b32 v5, v5, v3")
    g("v_lshlrev_b32 v5, 4, v5")
    g("v_lshl_add_u32 v5, v4, 11, v5")
    g(f"s_lshl_b32 s{sT2}, s{sT0}, 14")
    g(f"v_add_u32 v5, s{sT2}, v5")
    D = 64
    for e in range(8):
        if e:
            g(f"v_xor_b32 v6, {e*16}, v5")
            a = 6
        else:
            a = 5
        g(f"ds_read_b128 v[{D+4*e}:{D+4*e+3}], v{a} offset:{e*256}")
    g(f"s_lshr_b32 s{sT2}, s{sT0}, 1")
    g(f"s_lshl_b32 s{sT2}, s{sT2}, 6")
    g(f"v_lshl_add_u32 v6, v3, 2, s{sT2}")
    g(f"s_and_b32 s{sT2}, s{sT0}, 1")
    g(f"s_lshl_b32 s{sT3}, s{sT2}, 7")
    g(f"v_lshl_add_u32 v7, v4, 4, s{sT3}")
    g("v_mov_b32 v9, 0x800000")
    for rho in range(4):
        g(f"v_add_u32 v8, {rho}, v6")
        g(f"v_cmp_gt_u32 vcc, s{sLIM}, v8")
        g(f"v_lshl_add_u32 v{13+rho}, v8, 9, v7")
        g("s_nop 0")
        g(f"v_cndmask_b32 v{13+rho}, v9, v{13+rho}, vcc")
    GP = 4096
    PS = 16384
    g(f"s_lshl_b32 s{sT3}, s{sT2}, 9")
    g(f"s_lshl_b32 s{sT2}, s{sWV}, 10")
    g(f"s_add_u32 s{sT3}, s{sT3}, s{sT2}")
    g(f"s_add_u32 s{sT3}, s{sT3}, 0x10000")
    g(f"v_lshl_add_u32 v17, v4, 6, s{sT3}")
    g("v_add_u32 v11, 0x10000, v12")
    g.lab("L_gpoll")
    g("s_waitcnt vmcnt(0)")
    g(f"v_max3_u32 v3, v{GV}, v{GV+1}, v{GV+2}")
    for k in range(3, 31, 2):
        g(f"v_max3_u32 v3, v3, v{GV+k}, v{GV+k+1}")
    g(f"v_max_u32 v3, v3, v{GV+31}")
    g(f"s_add_u32 s{sSPIN}, s{sSPIN}, 1")
    g("v_cmp_eq_u32 vcc, -1, v3")
    g(f"s_cmp_ge_u32 s{sSPIN}, 0x8000")
    g("s_cbranch_scc1 L_gdone")
    g("s_cbranch_vccz L_gdone")
    g("s_sleep 1")
    gather_loads()
    g("s_branch L_gpoll")
    g.lab("L_gdone")
    stamp(4)
    for k in range(4):
        for h2 in range(2):
            a = GV + 4 * k + 2 * h2
            b = a + 16
            g(f"v_pk_add_f32 v[{a}:{a+1}], v[{a}:{a+1}], v[{b}:{b+1}]")
    for k in range(2):
        for h2 in range(2):
            a = GV + 4 * k + 2 * h2
            b = a + 8
            g(f"v_pk_add_f32 v[{a}:{a+1}], v[{a}:{a+1}], v[{b}:{b+1}]")
    for h2 in range(2):
        a = GV + 2 * h2
        b = a + 4
        g(f"v_pk_add_f32 v[{a}:{a+1}], v[{a}:{a+1}], v[{b}:{b+1}]")
    g(f"ds_write_b128 v11, v[{GV}:{GV+3}] offset:{GP}")
    g("v_lshlrev_b32 v3, 4, v2")
    g("v_add_u32 v3, 0x10000, v3")
    g("s_waitcnt lgkmcnt(0)")
    g("s_barrier")
    for k in range(8):
        g(f"ds_read_b128 v[{GV+4*k}:{GV+4*k+3}], v3 offset:{GP+k*1024}")
    g(f"s_mov_b32 s{sT0}, {f32bits(1.0/7999.0):#x}")
    g(f"s_mov_b32 s{sT1}, {f32bits(1e-5):#x}")
    g("v_lshlrev_b32 v18, 16, v30")
    g("v_and_b32 v19, 0xffff0000, v30")
    g("v_lshlrev_b32 v20, 16, v31")
    g("v_and_b32 v21, 0xffff0000, v31")
    g("s_waitcnt lgkmcnt(0)")
    for k in range(4):
        for h2 in range(2):
            a = GV + 4 * k + 2 * h2
            b = a + 16
            g(f"v_pk_add_f32 v[{a}:{a+1}], v[{a}:{a+1}], v[{b}:{b+1}]")
    for k in range(2):
        for h2 in range(2):
            a = GV + 4 * k + 2 * h2
            b = a + 8
            g(f"v_pk_add_f32 v[{a}:{a+1}], v[{a}:{a+1}], v[{b}:{b+1}]")
    for h2 in range(2):
        a = GV + 2 * h2
        b = a + 4
        g(f"v_pk_add_f32 v[{a}:{a+1}], v[{a}:{a+1}], v[{b}:{b+1}]")
    for cidx in range(2):
        S, Q = GV + 2 * cidx, GV + 2 * cidx + 1
        g(f"v_mul_f32 v{S}, s{sT0}, v{S}")
        g(f"v_mul_f32 v{Q}, s{sT0}, v{Q}")
        g(f"v_fma_f32 v{Q}, -v{S}, v{S}, v{Q}")
        g(f"v_max_f32 v{Q}, 0, v{Q}")
        g(f"v_add_f32 v{Q}, s{sT1}, v{Q}")
        g(f"v_rsq_f32 v{Q}, v{Q}")
        g("s_nop 0")
        g(f"v_mul_f32 v{22+2*cidx}, v{18+cidx}, v{Q}")
        g(f"v_fma_f32 v{23+2*cidx}, -v{S}, v{22+2*cidx}, v{20+cidx}")
    g(f"ds_write_b128 v11, v[22:25] offset:{PS}")
    P = 32
    c0 = -2.0 * 1.4426950408889634 * 0.7978845608028654
    c1 = c0 * 0.044715
    g(f"v_mov_b32 v28, {f32bits(c1):#x}")
    g(f"v_mov_b32 v29, {f32bits(c0):#x}")
    g("s_waitcnt lgkmcnt(0)")
    for k in range(4):
        g(f"ds_read_b128 v[{P+4*k}:{P+4*k+3}], v17 offset:{PS+k*16}")
    g("s_waitcnt lgkmcnt(0)")
    stamp(5)
    BC = "op_sel:[0,0,1] op_sel_hi:[1,0,1]"
    U = 96
    for rp in range(2):
        for e in range(8):
            d = D + 4 * e + 2 * rp
            g(f"v_pk_fma_f32 v[{d}:{d+1}], v[{d}:{d+1}], v[{P+2*e}:{P+2*e+1}], v[{P+2*e}:{P+2*e+1}] {BC}")
        for e in range(8):
            d = D + 4 * e + 2 * rp
            u = U + 2 * e
            g(f"v_pk_mul_f32 v[{u}:{u+1}], v[{d}:{d+1}], v[{d}:{d+1}]")
        for e in range(8):
            u = U + 2 * e
            g(f"v_pk_fma_f32 v[{u}:{u+1}], v[{u}:{u+1}], v[28:29], v[28:29] {BC}")
        for e in range(8):
            d = D + 4 * e + 2 * rp
            u = U + 2 * e
            g(f"v_pk_mul_f32 v[{u}:{u+1}], v[{u}:{u+1}], v[{d}:{d+1}]")
        for e in range(16):
            g(f"v_exp_f32 v{U+e}, v{U+e}")
        for e in range(8):
            u = U + 2 * e
            g(f"v_pk_add_f32 v[{u}:{u+1}], v[{u}:{u+1}], 1.0 op_sel_hi:[1,0]")
        for e in range(16):
            g(f"v_rcp_f32 v{U+e}, v{U+e}")
        for e in range(8):
            d = D + 4 * e + 2 * rp
            u = U + 2 * e
            g(f"v_pk_mul_f32 v[{d}:{d+1}], v[{u}:{u+1}], v[{d}:{d+1}]")
        for r2 in range(2):
            rho = 2 * rp + r2
            O = 112 + 4 * rho
            for k in range(4):
                g(f"v_cvt_pk_bf16_f32 v{O+k}, v{D+4*(2*k)+rho}, v{D+4*(2*k+1)+rho}")
            g(f"buffer_store_dwordx4 v[{O}:{O+3}], v{13+rho}, s[{SO}:{SO+3}], s{sOB} offen{op}")
    if stamps:
        g("s_waitcnt vmcnt(0)")
        stamp(6)
    g.lab("L_end")
    g("s_endpgm")

    out = HEADER
    out += "; @launch grid=(256,1,1) block=(512,1,1) lds=163840\n"
    out += '.amdgcn_target "amdgcn-amd-amdhsa--gfx950"\n.text\n'
    out += f".globl {NAME}_kernel\n.p2align 8\n.type {NAME}_kernel,@function\n{NAME}_kernel:\n"
    out += "\n".join(g.L) + "\n"
    out += f""".section .rodata,"a"
.p2align 6
.amdhsa_kernel {NAME}_kernel
  .amdhsa_next_free_vgpr {136 if stamps else 128}
  .amdhsa_next_free_sgpr 96
  .amdhsa_accum_offset {136 if stamps else 128}
  .amdhsa_group_segment_fixed_size 0
  .amdhsa_kernarg_size 56
  .amdhsa_user_sgpr_count 2
  .amdhsa_user_sgpr_kernarg_segment_ptr 1
  .amdhsa_system_sgpr_workgroup_id_x 1
  .amdhsa_float_denorm_mode_32 3
.end_amdhsa_kernel
"""
    return out


if __name__ == "__main__":
    opts = {}
    outp = f"cdna_kernels/{NAME}.s"
    for a in sys.argv[1:]:
        if a.startswith("-o="):
            outp = a[3:]
        else:
            k, _, v = a.partition("=")
            if v in ("0", "1"):
                v = bool(int(v))
            opts[k] = v
    open(outp, "w").write(build(opts))
    print("wrote", outp)
```

```python
import sys
import struct

NAME = "standalone__self_sup_conv_stem_wavlm__speech"

HEADER = """; Kernarg layout for this problem (56 bytes, ptrs only, base s[0:1]):
"""


def f32bits(x):
    return struct.unpack("<I", struct.pack("<f", x))[0]


class Gen:
    def __init__(self, opts):
        self.o = opts
        self.L = []

    def __call__(self, s):
        self.L.append("    " + s)

    def lab(self, s):
        self.L.append(s + ":")

    def c(self, s):
        self.L.append("    ; " + s)


def build(opts):
    g = Gen(opts)
    xpol = opts.get("xpol", "nt")
    opol = opts.get("opol", "")
    stamps = opts.get("stamps", False)
    xp = (" " + xpol) if xpol else ""
    op = (" " + opol) if opol else ""

    SX, SW, SO, SG, SD, SGA, SBE = 20, 24, 28, 32, 36, 40, 44
    sXCD, sR, sQ, sPI, sB, sT, sWV = 50, 51, 52, 53, 54, 55, 56
    sXB, sOB, sLIM, sGRP = 57, 58, 59, 60
    sI, sT0, sT1, sT2, sT3 = 61, 62, 63, 64, 65
    sFI = 66
    sLX, sLW, sXO, sWO, sC = 67, 68, 69, 70, 71
    sSPIN = 72
    SST = 76
    sTS = 80

    def srd(base, lo, hi, nbytes):
        g(f"s_mov_b32 s{base}, s{lo}")
        g(f"s_and_b32 s{base+1}, s{hi}, 0xffff")
        g(f"s_mov_b32 s{base+2}, {nbytes}")
        g(f"s_mov_b32 s{base+3}, 0x00020000")

    nstamp = [0]
    dbgspan = opts.get("dbgspan", False)

    def dstamp(slot, neg=False):
        if not dbgspan:
            return
        g(f"s_memrealtime s[{sTS}:{sTS+1}]")
        g("s_waitcnt lgkmcnt(0)")
        if neg:
            g(f"s_not_b32 s{sTS}, s{sTS}")
        g(f"v_mov_b32 v128, s{sTS}")
        g(f"v_mov_b32 v129, {slot*4}")
        g("s_mov_b64 exec, 1")
        g(f"buffer_atomic_umax v128, v129, s[{SD}:{SD+3}], 0 offen")
        g("s_mov_b64 exec, -1")

    def stamp(slot):
        if not stamps:
            return
        g(f"s_memrealtime s[{sTS}:{sTS+1}]")
        g("s_waitcnt lgkmcnt(0)")
        g(f"v_mov_b32 v128, s{sTS}")
        g(f"buffer_store_dword v128, v129, s[{SST}:{SST+3}], 0 offen offset:{slot*4}")

    g("s_cmp_ge_u32 s2, 256")
    g("s_cbranch_scc1 L_end")
    g("s_load_dwordx8 s[4:11], s[0:1], 0")
    g("s_load_dwordx4 s[12:15], s[0:1], 32")
    g("s_load_dwordx2 s[16:17], s[0:1], 48")
    g(f"s_and_b32 s{sXCD}, s2, 7")
    g(f"s_lshr_b32 s{sR}, s2, 3")
    g(f"s_and_b32 s{sQ}, s{sR}, 1")
    g(f"s_lshr_b32 s{sPI}, s{sR}, 1")
    g(f"s_lshl_b32 s{sPI}, s{sPI}, 3")
    g(f"s_add_u32 s{sPI}, s{sPI}, s{sXCD}")
    g(f"s_cmp_ge_u32 s{sPI}, 126")
    g("s_cbranch_scc1 L_end")
    g(f"s_cmp_ge_u32 s{sPI}, 63")
    g(f"s_cselect_b32 s{sB}, 1, 0")
    g(f"s_mul_i32 s{sT}, s{sB}, 63")
    g(f"s_sub_u32 s{sT}, s{sPI}, s{sT}")
    g("v_lshrrev_b32 v1, 6, v0")
    g("v_and_b32 v2, 63, v0")
    g(f"v_readfirstlane_b32 s{sWV}, v1")
    g(f"s_mul_i32 s{sXB}, s{sB}, 16000")
    g(f"s_mul_i32 s{sT0}, s{sT}, 254")
    g(f"s_add_u32 s{sXB}, s{sXB}, s{sT0}")
    g(f"s_lshl_b32 s{sXB}, s{sXB}, 9")
    g(f"s_mul_i32 s{sOB}, s{sB}, 7999")
    g(f"s_mul_i32 s{sT0}, s{sT}, 127")
    g(f"s_add_u32 s{sOB}, s{sOB}, s{sT0}")
    g(f"s_lshl_b32 s{sOB}, s{sOB}, 9")
    g(f"s_lshl_b32 s{sT1}, s{sQ}, 8")
    g(f"s_add_u32 s{sOB}, s{sOB}, s{sT1}")
    g(f"s_sub_u32 s{sLIM}, 7999, s{sT0}")
    g(f"s_min_u32 s{sLIM}, s{sLIM}, 127")
    g(f"s_lshl_b32 s{sGRP}, s{sB}, 1")
    g(f"s_add_u32 s{sGRP}, s{sGRP}, s{sQ}")
    g("s_waitcnt lgkmcnt(0)")
    srd(SX, 4, 5, 16384000)
    srd(SW, 6, 7, 393216)
    srd(SGA, 8, 9, 512)
    srd(SBE, 10, 11, 512)
    srd(SO, 12, 13, 8190976)
    srd(SD, 14, 15, 256)
    g(f"s_lshl_b32 s{sT0}, s{sGRP}, 16")
    g(f"s_add_u32 s{SG}, s16, s{sT0}")
    g(f"s_addc_u32 s{SG+1}, s17, 0")
    g(f"s_and_b32 s{SG+1}, s{SG+1}, 0xffff")
    g(f"s_mov_b32 s{SG+2}, {63*1024}")
    g(f"s_mov_b32 s{SG+3}, 0x00020000")
    if stamps:
        g(f"s_add_u32 s{SST}, s16, 0x100000")
        g(f"s_addc_u32 s{SST+1}, s17, 0")
        g(f"s_and_b32 s{SST+1}, s{SST+1}, 0xffff")
        g(f"s_mov_b32 s{SST+2}, 0x10000")
        g(f"s_mov_b32 s{SST+3}, 0x00020000")
        g(f"s_lshl_b32 s{sT0}, s2, 8")
        g(f"s_lshr_b32 s{sT1}, s{sWV}, 2")
        g(f"s_lshl_b32 s{sT1}, s{sT1}, 7")
        g(f"s_add_u32 s{sT0}, s{sT0}, s{sT1}")
        g(f"v_mov_b32 v129, s{sT0}")
        g("v_and_b32 v128, 0xff, v0")
        g("v_cmp_ne_u32 vcc, 0, v128")
        g("v_mov_b32 v128, 0x800000")
        g("s_nop 1")
        g("v_cndmask_b32 v129, v129, v128, vcc")
        stamp(0)
    g(f"s_cmp_ge_u32 s{sWV}, 4")
    g("s_cbranch_scc1 L_loader")
    dstamp(0, True)
    dstamp(1)

    vAa = [[16 + v * 4 + ks for ks in range(4)] for v in range(2)]
    vBa = [24, 25]
    FR = [32, 48]
    ACC = 64

    def T(mt, nt):
        return ACC + (mt * 2 + nt) * 16

    g.c("---- compute wave setup")
    g(f"s_mov_b32 s{sFI}, 99")
    g(f"s_cmp_lg_u32 s{sWV}, 0")
    g("s_cbranch_scc1 L_nosent")
    g(f"s_mov_b32 s{sFI}, 1")
    g(f"s_lshl_b32 s{sT0}, s{sT}, 10")
    g("v_lshlrev_b32 v3, 4, v2")
    g("v_mov_b32 v4, -1")
    g("v_mov_b32 v5, -1")
    g("v_mov_b32 v6, -1")
    g("v_mov_b32 v7, -1")
    g(f"buffer_store_dwordx4 v[4:7], v3, s[{SG}:{SG+3}], s{sT0} offen sc1")
    g.lab("L_nosent")
    g(f"s_lshr_b32 s{sT0}, s{sWV}, 1")
    g(f"s_and_b32 s{sT1}, s{sWV}, 1")
    g(f"s_lshl_b32 s{sT2}, s{sT0}, 6")
    g("v_and_b32 v3, 31, v2")
    g("v_lshrrev_b32 v8, 5, v2")
    g(f"v_add_u32 v9, s{sT2}, v3")
    for v in range(2):
        if v == 1:
            g("v_add_u32 v9, 1, v9")
        g("v_bfe_u32 v10, v9, 1, 3")
        g("v_xor_b32 v10, v10, v8")
        g("v_lshlrev_b32 v10, 4, v10")
        g(f"v_lshl_add_u32 v{vAa[v][0]}, v9, 7, v10")
        for ks in range(1, 4):
            g(f"v_xor_b32 v{vAa[v][ks]}, {ks*32}, v{vAa[v][0]}")
    g("v_bfe_u32 v9, v2, 2, 2")
    g("v_lshl_add_u32 v10, v8, 3, v9")
    g("v_lshlrev_b32 v10, 8, v10")
    g("v_bfe_u32 v11, v2, 4, 1")
    g("v_lshl_add_u32 v10, v11, 5, v10")
    g("v_and_b32 v11, 3, v2")
    g("v_lshl_add_u32 v10, v11, 3, v10")
    g(f"s_lshl_b32 s{sT2}, s{sT1}, 1")
    g(f"v_xor_b32 v11, s{sT2}, v9")
    g("v_lshl_add_u32 v10, v11, 6, v10")
    g(f"v_add_u32 v{vBa[0]}, 0x10000, v10")
    g(f"v_xor_b32 v{vBa[1]}, 64, v{vBa[0]}")
    for i in range(64):
        g(f"v_mov_b32 v{ACC+i}, 0")

    def reads(st, tap, ks):
        var = 1 if tap == 2 else 0
        pl = 1 if tap == 1 else 0
        f = FR[st]
        for mt in range(2):
            g(f"ds_read_b128 v[{f+mt*4}:{f+mt*4+3}], v{vAa[var][ks]} offset:{pl*16384+mt*4096}")
        for nt in range(2):
            for j in range(2):
                r = f + 8 + nt * 4 + j * 2
                g(f"ds_read_b64_tr_b16 v[{r}:{r+1}], v{vBa[nt]} offset:{tap*16384+ks*4096+j*1024}")

    def mfmas(st):
        f = FR[st]
        for mt in range(2):
            for nt in range(2):
                t = T(mt, nt)
                g(f"v_mfma_f32_32x32x16_bf16 v[{t}:{t+15}], v[{f+mt*4}:{f+mt*4+3}], v[{f+8+nt*4}:{f+8+nt*4+3}], v[{t}:{t+15}]")

    g(f"s_mov_b32 s{sI}, 0")
    g("s_barrier")
    stamp(1)
    dstamp(2)
    reads(0, 0, 0)
    g.lab("L_loop")
    for tap in range(3):
        for ks in range(4):
            st = (tap * 4 + ks) & 1
            if ks < 3:
                reads(st ^ 1, tap, ks + 1)
                g("s_waitcnt lgkmcnt(6)")
            else:
                g("s_waitcnt lgkmcnt(0)")
                if tap == 2:
                    for v in range(2):
                        for k2 in range(4):
                            g(f"v_xor_b32 v{vAa[v][k2]}, 0x8000, v{vAa[v][k2]}")
                    for nt in range(2):
                        g(f"v_xor_b32 v{vBa[nt]}, 0xc000, v{vBa[nt]}")
                g("s_barrier")
                reads(st ^ 1, (tap + 1) % 3, 0)
            mfmas(st)
    g(f"s_add_u32 s{sI}, s{sI}, 1")
    g(f"s_cmp_lg_u32 s{sI}, s{sFI}")
    g("s_cbranch_scc1 L_noflag")
    g.c("sentinel has landed: tell the other workgroups of the group")
    g("s_waitcnt vmcnt(0)")
    g(f"s_and_b32 s{sT0}, s{sT}, 7")
    g(f"s_lshl_b32 s{sT1}, s{sGRP}, 3")
    g(f"s_add_u32 s{sT0}, s{sT0}, s{sT1}")
    g(f"s_lshl_b32 s{sT0}, s{sT0}, 2")
    g(f"s_add_u32 s{sT0}, s{sT0}, 128")
    g(f"v_mov_b32 v3, s{sT0}")
    g("v_mov_b32 v4, 1")
    g("s_mov_b64 exec, 1")
    g(f"buffer_atomic_add v4, v3, s[{SD}:{SD+3}], 0 offen")
    g("s_mov_b64 exec, -1")
    g.lab("L_noflag")
    g(f"s_cmp_lt_u32 s{sI}, 4")
    g("s_cbranch_scc1 L_loop")
    stamp(2)
    dstamp(3)

    g.c("---- statistics")
    g("s_waitcnt lgkmcnt(0)")
    g(f"s_lshr_b32 s{sT0}, s{sWV}, 1")
    g(f"s_and_b32 s{sT1}, s{sWV}, 1")
    g(f"s_lshl_b32 s{sT2}, s{sT0}, 6")
    g(f"s_add_u32 s{sT2}, s{sT2}, 56")
    g(f"v_lshl_add_u32 v9, v8, 2, s{sT2}")
    g("s_nop 7")
    g("s_nop 7")
    for i in range(1, 4):
        g(f"v_add_u32 v10, {i}, v9")
        g(f"v_cmp_gt_u32 vcc, s{sLIM}, v10")
        g("s_nop 1")
        for nt in range(2):
            r = T(1, nt) + 12 + i
            g(f"v_cndmask_b32 v{r}, 0, v{r}, vcc")
    for nt in range(2):
        sa, sb, qa, qb = 32 + nt * 8, 34 + nt * 8, 36 + nt * 8, 38 + nt * 8
        prs = [T(mt, nt) + 2 * k for mt in range(2) for k in range(8)]
        g(f"v_pk_add_f32 v[{sa}:{sa+1}], v[{prs[0]}:{prs[0]+1}], v[{prs[2]}:{prs[2]+1}]")
        g(f"v_pk_add_f32 v[{sb}:{sb+1}], v[{prs[1]}:{prs[1]+1}], v[{prs[3]}:{prs[3]+1}]")
        g(f"v_pk_mul_f32 v[{qa}:{qa+1}], v[{prs[0]}:{prs[0]+1}], v[{prs[0]}:{prs[0]+1}]")
        g(f"v_pk_mul_f32 v[{qb}:{qb+1}], v[{prs[1]}:{prs[1]+1}], v[{prs[1]}:{prs[1]+1}]")
        for k in range(2, 16):
            p = prs[k]
            q = qa if k % 2 == 0 else qb
            s = sa if k % 2 == 0 else sb
            if k >= 4:
                g(f"v_pk_add_f32 v[{s}:{s+1}], v[{s}:{s+1}], v[{p}:{p+1}]")
            g(f"v_pk_fma_f32 v[{q}:{q+1}], v[{p}:{p+1}], v[{p}:{p+1}], v[{q}:{q+1}]")
        g(f"v_pk_add_f32 v[{sa}:{sa+1}], v[{sa}:{sa+1}], v[{sb}:{sb+1}]")
        g(f"v_pk_add_f32 v[{qa}:{qa+1}], v[{qa}:{qa+1}], v[{qb}:{qb+1}]")
    g("v_add_f32 v48, v32, v33")
    g("v_add_f32 v49, v40, v41")
    g("v_add_f32 v50, v36, v37")
    g("v_add_f32 v51, v44, v45")
    g("s_nop 1")
    g("v_permlane32_swap_b32 v48, v49")
    g("v_permlane32_swap_b32 v50, v51")
    g("s_nop 1")
    g("v_add_f32 v52, v48, v49")
    g("v_add_f32 v53, v50, v51")
    XCH = 65536
    g(f"s_lshl_b32 s{sT2}, s{sT1}, 9")
    g(f"v_lshl_add_u32 v10, v2, 3, s{sT2}")
    g(f"v_add_u32 v11, {XCH}, v10")
    g(f"s_cmp_eq_u32 s{sT0}, 0")
    g("s_cbranch_scc1 L_wm0a")
    g("ds_write_b64 v11, v[52:53]")
    g("s_waitcnt lgkmcnt(0)")
    g.lab("L_wm0a")
    g("s_barrier")
    g(f"s_cmp_lg_u32 s{sT0}, 0")
    g("s_cbranch_scc1 L_wm1b")
    g("ds_read_b64 v[54:55], v11")
    g(f"s_lshl_b32 s{sT2}, s{sT}, 10")
    g("v_mov_b32 v56, 0x7fc00000")
    g("s_waitcnt lgkmcnt(0)")
    g("v_pk_add_f32 v[52:53], v[52:53], v[54:55]")
    g("v_cmp_eq_u32 vcc, -1, v52")
    g("s_nop 1")
    g("v_cndmask_b32 v52, v52, v56, vcc")
    g("v_cmp_eq_u32 vcc, -1, v53")
    g("s_nop 1")
    g("v_cndmask_b32 v53, v53, v56, vcc")
    g(f"buffer_store_dwordx2 v[52:53], v10, s[{SG}:{SG+3}], s{sT2} offen sc1")
    g.lab("L_wm1b")
    stamp(3)
    g.c("---- transpose the accumulators through LDS (fp32, column-major, swizzled)")
    g("v_and_b32 v3, 31, v2")
    g("v_and_b32 v9, 7, v3")
    g("v_bfe_u32 v10, v3, 3, 2")
    g("v_lshlrev_b32 v10, 2, v10")
    g("v_xor_b32 v9, v9, v10")
    g("v_xor_b32 v9, v9, v8")
    g("v_lshlrev_b32 v9, 4, v9")
    g("v_lshl_add_u32 v9, v3, 8, v9")
    g(f"s_lshl_b32 s{sT2}, s{sWV}, 14")
    g(f"v_add_u32 v9, s{sT2}, v9")
    for mt in range(2):
        for gq in range(4):
            x = (2 * gq + 8 * mt) * 16
            if x:
                g(f"v_xor_b32 v10, {x}, v9")
                a = 10
            else:
                a = 9
            for nt in range(2):
                r = T(mt, nt) + gq * 4
                g(f"ds_write_b128 v{a}, v[{r}:{r+3}] offset:{nt*8192}")
    g("s_branch L_join")

    g.lab("L_loader")
    g(f"s_sub_u32 s{sT3}, s{sWV}, 4")
    g("v_lshrrev_b32 v3, 3, v2")
    g(f"s_lshl_b32 s{sT0}, s{sT3}, 3")
    g(f"v_add_u32 v3, s{sT0}, v3")
    g("v_lshlrev_b32 v3, 10, v3")
    g("v_lshrrev_b32 v4, 4, v2")
    g(f"s_and_b32 s{sT0}, s{sT3}, 1")
    g(f"s_lshl_b32 s{sT0}, s{sT0}, 2")
    g(f"v_xor_b32 v5, s{sT0}, v4")
    g("v_and_b32 v6, 7, v2")
    g("v_xor_b32 v5, v5, v6")
    g("v_lshl_add_u32 v16, v5, 4, v3")
    g(f"s_lshl_b32 s{sT0}, s{sT3}, 2")
    g(f"v_add_u32 v3, s{sT0}, v4")
    g("v_lshlrev_b32 v3, 9, v3")
    g("v_lshlrev_b32 v5, 2, v4")
    g("v_and_b32 v6, 15, v2")
    g("v_xor_b32 v5, v5, v6")
    g("v_lshl_add_u32 v3, v5, 4, v3")
    g(f"s_lshl_b32 s{sT0}, s{sQ}, 8")
    g(f"v_add_u32 v17, s{sT0}, v3")
    if opts.get("wpf", True):
        g(f"s_mul_i32 s{sT0}, s{sR}, 12288")
        g(f"s_mul_i32 s{sT1}, s{sT3}, 3072")
        g(f"s_add_u32 s{sT0}, s{sT0}, s{sT1}")
        g("v_lshlrev_b32 v3, 4, v2")
        for u in range(3):
            g(f"buffer_load_dwordx4 v[{32+4*u}:{35+4*u}], v3, s[{SW}:{SW+3}], s{sT0} offen offset:{u*1024}")
    g(f"s_lshl_b32 s{sLX}, s{sT3}, 10")
    g(f"s_add_u32 s{sLW}, s{sLX}, 0x10000")

    def chunk_setup(nreg_or_imm):
        if isinstance(nreg_or_imm, int):
            n = nreg_or_imm
            c0 = ((n & 1) << 1) | (n >> 1)
            g(f"s_lshl_b32 s{sC}, s{sQ}, 1")
            if c0:
                g(f"s_xor_b32 s{sC}, s{sC}, {c0}")
        else:
            n = nreg_or_imm
            g(f"s_and_b32 s{sC}, {n}, 1")
            g(f"s_xor_b32 s{sC}, s{sC}, s{sQ}")
            g(f"s_lshl_b32 s{sC}, s{sC}, 1")
            g(f"s_lshr_b32 s{sT0}, {n}, 1")
            g(f"s_or_b32 s{sC}, s{sC}, s{sT0}")
        g(f"s_lshl_b32 s{sXO}, s{sC}, 7")
        g(f"s_add_u32 s{sXO}, s{sXO}, s{sXB}")
        g(f"s_lshl_b32 s{sWO}, s{sC}, 15")

    def issue_x(pl):
        for j in range(4):
            g(f"s_add_u32 m0, s{sLX}, {pl*16384 + j*4096}")
            g(f"s_add_u32 s{sT0}, s{sXO}, {pl*512 + j*32768}")
            g(f"buffer_load_dwordx4 v16, s[{SX}:{SX+3}], s{sT0} offen{xp} lds")

    def issue_w(tap):
        for j in range(4):
            g(f"s_add_u32 m0, s{sLW}, {tap*16384 + j*4096}")
            g(f"s_add_u32 s{sT0}, s{sWO}, {tap*131072 + j*8192}")
            g(f"buffer_load_dwordx4 v17, s[{SW}:{SW+3}], s{sT0} offen lds")

    chunk_setup(0)
    issue_x(0)
    issue_x(1)
    for tap in range(3):
        issue_w(tap)
    g(f"s_mov_b32 s{sI}, 1")
    g.lab("L_lloop")
    chunk_setup(f"s{sI}")
    g(f"s_xor_b32 s{sLX}, s{sLX}, 0x8000")
    g(f"s_xor_b32 s{sLW}, s{sLW}, 0xc000")
    g("s_waitcnt vmcnt(8)")
    g("s_barrier")
    issue_x(0)
    g("s_waitcnt vmcnt(8)")
    g("s_barrier")
    issue_x(1)
    g("s_waitcnt vmcnt(8)")
    g("s_barrier")
    for tap in range(3):
        issue_w(tap)
    g(f"s_add_u32 s{sI}, s{sI}, 1")
    g(f"s_cmp_lt_u32 s{sI}, 4")
    g("s_cbranch_scc1 L_lloop")
    g("s_waitcnt vmcnt(8)")
    g("s_barrier")
    g("s_waitcnt vmcnt(4)")
    g("s_barrier")
    g("s_waitcnt vmcnt(0)")
    stamp(1)
    g("s_barrier")
    g.c("wave 4: wait until every workgroup of the group has armed its slot")
    g(f"s_cmp_lg_u32 s{sWV}, 4")
    g("s_cbranch_scc1 L_noflagwait")
    g(f"s_lshl_b32 s{sT0}, s{sGRP}, 5")
    g(f"s_add_u32 s{sT0}, s{sT0}, 128")
    g("v_and_b32 v3, 7, v2")
    g("v_cmp_eq_u32 vcc, 7, v3")
    g("v_mov_b32 v4, 8")
    g("v_mov_b32 v5, 7")
    g("v_cndmask_b32 v4, v4, v5, vcc")
    g(f"v_lshl_add_u32 v3, v3, 2, s{sT0}")
    g(f"s_mov_b32 s{sSPIN}, 0")
    g.lab("L_flagpoll")
    g(f"buffer_load_dword v5, v3, s[{SD}:{SD+3}], 0 offen sc1")
    g(f"s_add_u32 s{sSPIN}, s{sSPIN}, 1")
    g("s_waitcnt vmcnt(0)")
    g("v_cmp_gt_u32 vcc, v4, v5")
    g(f"s_cmp_ge_u32 s{sSPIN}, 0x8000")
    g("s_cbranch_scc1 L_noflagwait")
    g("s_cbranch_vccz L_noflagwait")
    g("s_sleep 2")
    g("s_branch L_flagpoll")
    g.lab("L_noflagwait")
    stamp(2)
    g("s_barrier")
    g("s_barrier")

    g.lab("L_join")
    g(f"s_lshl_b32 s{sT0}, s{sQ}, 8")
    g("v_lshlrev_b32 v3, 2, v2")
    g(f"buffer_load_dword v30, v3, s[{SGA}:{SGA+3}], s{sT0} offen")
    g(f"buffer_load_dword v31, v3, s[{SBE}:{SBE+3}], s{sT0} offen")
    g("s_waitcnt lgkmcnt(0)")
    g("s_barrier")
    GV = 96
    g(f"s_lshl_b32 s{sT0}, s{sWV}, 10")
    g(f"v_lshl_add_u32 v12, v2, 4, s{sT0}")
    g(f"s_mov_b32 s{sSPIN}, 0")

    def gather_loads():
        for k in range(8):
            g(f"s_mov_b32 s{sT1}, {k*8192}")
            g(f"buffer_load_dwordx4 v[{GV+4*k}:{GV+4*k+3}], v12, s[{SG}:{SG+3}], s{sT1} offen sc1")

    gather_loads()
    g(f"s_and_b32 s{sT0}, s{sWV}, 3")
    g(f"s_lshr_b32 s{sT1}, s{sWV}, 2")
    g("v_lshrrev_b32 v3, 3, v2")
    g(f"s_lshl_b32 s{sT2}, s{sT1}, 3")
    g(f"v_add_u32 v3, s{sT2}, v3")
    g("v_and_b32 v4, 7, v2")
    g("v_and_b32 v5, 3, v2")
    g("v_lshlrev_b32 v5, 2, v5")
    g("v_xor_b32 v5, v5, v3")
    g("v_lshlrev_b32 v5, 4, v5")
    g("v_lshl_add_u32 v5, v4, 11, v5")
    g(f"s_lshl_b32 s{sT2}, s{sT0}, 14")
    g(f"v_add_u32 v5, s{sT2}, v5")
    D = 64
    for e in range(8):
        if e:
            g(f"v_xor_b32 v6, {e*16}, v5")
            a = 6
        else:
            a = 5
        g(f"ds_read_b128 v[{D+4*e}:{D+4*e+3}], v{a} offset:{e*256}")
    g(f"s_lshr_b32 s{sT2}, s{sT0}, 1")
    g(f"s_lshl_b32 s{sT2}, s{sT2}, 6")
    g(f"v_lshl_add_u32 v6, v3, 2, s{sT2}")
    g(f"s_and_b32 s{sT2}, s{sT0}, 1")
    g(f"s_lshl_b32 s{sT3}, s{sT2}, 7")
    g(f"v_lshl_add_u32 v7, v4, 4, s{sT3}")
    g("v_mov_b32 v9, 0x800000")
    for rho in range(4):
        g(f"v_add_u32 v8, {rho}, v6")
        g(f"v_cmp_gt_u32 vcc, s{sLIM}, v8")
        g(f"v_lshl_add_u32 v{13+rho}, v8, 9, v7")
        g("s_nop 0")
        g(f"v_cndmask_b32 v{13+rho}, v9, v{13+rho}, vcc")
    GP = 4096
    PS = 16384
    g(f"s_lshl_b32 s{sT3}, s{sT2}, 9")
    g(f"s_lshl_b32 s{sT2}, s{sWV}, 10")
    g(f"s_add_u32 s{sT3}, s{sT3}, s{sT2}")
    g(f"s_add_u32 s{sT3}, s{sT3}, 0x10000")
    g(f"v_lshl_add_u32 v17, v4, 6, s{sT3}")
    g("v_add_u32 v11, 0x10000, v12")
    g.lab("L_gpoll")
    g("s_waitcnt vmcnt(0)")
    g(f"v_max3_u32 v3, v{GV}, v{GV+1}, v{GV+2}")
    for k in range(3, 31, 2):
        g(f"v_max3_u32 v3, v3, v{GV+k}, v{GV+k+1}")
    g(f"v_max_u32 v3, v3, v{GV+31}")
    g(f"s_add_u32 s{sSPIN}, s{sSPIN}, 1")
    g("v_cmp_eq_u32 vcc, -1, v3")
    g(f"s_cmp_ge_u32 s{sSPIN}, 0x8000")
    g("s_cbranch_scc1 L_gdone")
    g("s_cbranch_vccz L_gdone")
    g("s_sleep 1")
    gather_loads()
    g("s_branch L_gpoll")
    g.lab("L_gdone")
    stamp(4)
    dstamp(4)
    for k in range(4):
        for h2 in range(2):
            a = GV + 4 * k + 2 * h2
            b = a + 16
            g(f"v_pk_add_f32 v[{a}:{a+1}], v[{a}:{a+1}], v[{b}:{b+1}]")
    for k in range(2):
        for h2 in range(2):
            a = GV + 4 * k + 2 * h2
            b = a + 8
            g(f"v_pk_add_f32 v[{a}:{a+1}], v[{a}:{a+1}], v[{b}:{b+1}]")
    for h2 in range(2):
        a = GV + 2 * h2
        b = a + 4
        g(f"v_pk_add_f32 v[{a}:{a+1}], v[{a}:{a+1}], v[{b}:{b+1}]")
    g(f"ds_write_b128 v11, v[{GV}:{GV+3}] offset:{GP}")
    g("v_lshlrev_b32 v3, 4, v2")
    g("v_add_u32 v3, 0x10000, v3")
    g("s_waitcnt lgkmcnt(0)")
    g("s_barrier")
    for k in range(8):
        g(f"ds_read_b128 v[{GV+4*k}:{GV+4*k+3}], v3 offset:{GP+k*1024}")
    g(f"s_mov_b32 s{sT0}, {f32bits(1.0/7999.0):#x}")
    g(f"s_mov_b32 s{sT1}, {f32bits(1e-5):#x}")
    g("v_lshlrev_b32 v18, 16, v30")
    g("v_and_b32 v19, 0xffff0000, v30")
    g("v_lshlrev_b32 v20, 16, v31")
    g("v_and_b32 v21, 0xffff0000, v31")
    g("s_waitcnt lgkmcnt(0)")
    for k in range(4):
        for h2 in range(2):
            a = GV + 4 * k + 2 * h2
            b = a + 16
            g(f"v_pk_add_f32 v[{a}:{a+1}], v[{a}:{a+1}], v[{b}:{b+1}]")
    for k in range(2):
        for h2 in range(2):
            a = GV + 4 * k + 2 * h2
            b = a + 8
            g(f"v_pk_add_f32 v[{a}:{a+1}], v[{a}:{a+1}], v[{b}:{b+1}]")
    for h2 in range(2):
        a = GV + 2 * h2
        b = a + 4
        g(f"v_pk_add_f32 v[{a}:{a+1}], v[{a}:{a+1}], v[{b}:{b+1}]")
    for cidx in range(2):
        S, Q = GV + 2 * cidx, GV + 2 * cidx + 1
        g(f"v_mul_f32 v{S}, s{sT0}, v{S}")
        g(f"v_mul_f32 v{Q}, s{sT0}, v{Q}")
        g(f"v_fma_f32 v{Q}, -v{S}, v{S}, v{Q}")
        g(f"v_max_f32 v{Q}, 0, v{Q}")
        g(f"v_add_f32 v{Q}, s{sT1}, v{Q}")
        g(f"v_rsq_f32 v{Q}, v{Q}")
        g("s_nop 0")
        g(f"v_mul_f32 v{22+2*cidx}, v{18+cidx}, v{Q}")
        g(f"v_fma_f32 v{23+2*cidx}, -v{S}, v{22+2*cidx}, v{20+cidx}")
    g(f"ds_write_b128 v11, v[22:25] offset:{PS}")
    P = 32
    c0 = -2.0 * 1.4426950408889634 * 0.7978845608028654
    c1 = c0 * 0.044715
    g(f"v_mov_b32 v28, {f32bits(c1):#x}")
    g(f"v_mov_b32 v29, {f32bits(c0):#x}")
    g("s_waitcnt lgkmcnt(0)")
    for k in range(4):
        g(f"ds_read_b128 v[{P+4*k}:{P+4*k+3}], v17 offset:{PS+k*16}")
    g("s_waitcnt lgkmcnt(0)")
    stamp(5)
    BC = "op_sel:[0,0,1] op_sel_hi:[1,0,1]"
    U = 96
    for rp in range(2):
        for e in range(8):
            d = D + 4 * e + 2 * rp
            g(f"v_pk_fma_f32 v[{d}:{d+1}], v[{d}:{d+1}], v[{P+2*e}:{P+2*e+1}], v[{P+2*e}:{P+2*e+1}] {BC}")
        for e in range(8):
            d = D + 4 * e + 2 * rp
            u = U + 2 * e
            g(f"v_pk_mul_f32 v[{u}:{u+1}], v[{d}:{d+1}], v[{d}:{d+1}]")
        for e in range(8):
            u = U + 2 * e
            g(f"v_pk_fma_f32 v[{u}:{u+1}], v[{u}:{u+1}], v[28:29], v[28:29] {BC}")
        for e in range(8):
            d = D + 4 * e + 2 * rp
            u = U + 2 * e
            g(f"v_pk_mul_f32 v[{u}:{u+1}], v[{u}:{u+1}], v[{d}:{d+1}]")
        for e in range(16):
            g(f"v_exp_f32 v{U+e}, v{U+e}")
        for e in range(8):
            u = U + 2 * e
            g(f"v_pk_add_f32 v[{u}:{u+1}], v[{u}:{u+1}], 1.0 op_sel_hi:[1,0]")
        for e in range(16):
            g(f"v_rcp_f32 v{U+e}, v{U+e}")
        for e in range(8):
            d = D + 4 * e + 2 * rp
            u = U + 2 * e
            g(f"v_pk_mul_f32 v[{d}:{d+1}], v[{u}:{u+1}], v[{d}:{d+1}]")
        for r2 in range(2):
            rho = 2 * rp + r2
            O = 112 + 4 * rho
            for k in range(4):
                g(f"v_cvt_pk_bf16_f32 v{O+k}, v{D+4*(2*k)+rho}, v{D+4*(2*k+1)+rho}")
            g(f"buffer_store_dwordx4 v[{O}:{O+3}], v{13+rho}, s[{SO}:{SO+3}], s{sOB} offen{op}")
    if stamps or dbgspan:
        g("s_waitcnt vmcnt(0)")
        stamp(6)
        dstamp(5)
    g.lab("L_end")
    g("s_endpgm")

    out = HEADER
    out += "; @launch grid=(256,1,1) block=(512,1,1) lds=163840\n"
    out += '.amdgcn_target "amdgcn-amd-amdhsa--gfx950"\n.text\n'
    out += f".globl {NAME}_kernel\n.p2align 8\n.type {NAME}_kernel,@function\n{NAME}_kernel:\n"
    out += "\n".join(g.L) + "\n"
    out += f""".section .rodata,"a"
.p2align 6
.amdhsa_kernel {NAME}_kernel
  .amdhsa_next_free_vgpr {136 if (stamps or dbgspan) else 128}
  .amdhsa_next_free_sgpr 96
  .amdhsa_accum_offset {136 if (stamps or dbgspan) else 128}
  .amdhsa_group_segment_fixed_size 0
  .amdhsa_kernarg_size 56
  .amdhsa_user_sgpr_count 2
  .amdhsa_user_sgpr_kernarg_segment_ptr 1
  .amdhsa_system_sgpr_workgroup_id_x 1
  .amdhsa_float_denorm_mode_32 3
.end_amdhsa_kernel
"""
    return out


if __name__ == "__main__":
    opts = {}
    outp = f"cdna_kernels/{NAME}.s"
    for a in sys.argv[1:]:
        if a.startswith("-o="):
            outp = a[3:]
        else:
            k, _, v = a.partition("=")
            if v in ("0", "1"):
                v = bool(int(v))
            opts[k] = v
    open(outp, "w").write(build(opts))
    print("wrote", outp)
```

```python
import sys
import struct

NAME = "standalone__self_sup_conv_stem_wavlm__speech"

HEADER = """; Kernarg layout for this problem (56 bytes, ptrs only, base s[0:1]):
"""


def f32bits(x):
    return struct.unpack("<I", struct.pack("<f", x))[0]


class Gen:
    def __init__(self, opts):
        self.o = opts
        self.L = []

    def __call__(self, s):
        self.L.append("    " + s)

    def lab(self, s):
        self.L.append(s + ":")

    def c(self, s):
        self.L.append("    ; " + s)


TAPS = {0: [0, 2, 1], 1: [1, 0, 2]}
XNEED = {0: ["C", "C", "H"], 1: ["C", "H", "H"]}


def build(opts):
    g = Gen(opts)
    xcpol = opts.get("xcpol", "nt")
    xhpol = opts.get("xhpol", "nt")
    opol = opts.get("opol", "nt")
    stamps = opts.get("stamps", False)
    R = int(opts.get("R", 2))
    SPINMAX = "0x8000"
    streams = opts.get("streams", "C01H2,C0H12,01C2H,01CH2").split(",")
    pol = lambda p: (" " + p.replace("+", " ")) if p else ""

    SX, SW, SO, SG, SD, SGA, SBE = 20, 24, 28, 32, 36, 40, 44
    sXCD, sR, sQ, sPI, sB, sT, sWV = 50, 51, 52, 53, 54, 55, 56
    sXB, sOB, sLIM, sGRP = 57, 58, 59, 60
    sI, sT0, sT1, sT2, sT3 = 61, 62, 63, 64, 65
    sFI = 66
    sLB = 67
    sMASK, sNEW = 68, 69
    sSPIN = 72
    sXC, sWC = 86, 90
    SST = 76
    sTS = 80

    def srd(base, lo, hi, nbytes):
        g(f"s_mov_b32 s{base}, s{lo}")
        g(f"s_and_b32 s{base+1}, s{hi}, 0xffff")
        g(f"s_mov_b32 s{base+2}, {nbytes}")
        g(f"s_mov_b32 s{base+3}, 0x00020000")

    def stamp(slot):
        if not stamps:
            return
        g(f"s_memrealtime s[{sTS}:{sTS+1}]")
        if slot in (1, 2):
            g(f"s_memtime s[{sTS+2}:{sTS+3}]")
        g("s_waitcnt lgkmcnt(0)")
        g(f"v_mov_b32 v128, s{sTS}")
        g(f"buffer_store_dword v128, v129, s[{SST}:{SST+3}], 0 offen offset:{slot*4}")
        if slot in (1, 2):
            g(f"v_mov_b32 v128, s{sTS+2}")
            g(f"buffer_store_dword v128, v129, s[{SST}:{SST+3}], 0 offen offset:{(slot+7)*4}")

    g("s_cmp_ge_u32 s2, 256")
    g("s_cbranch_scc1 L_end")
    g("s_load_dwordx8 s[4:11], s[0:1], 0")
    g("s_load_dwordx4 s[12:15], s[0:1], 32")
    g("s_load_dwordx2 s[16:17], s[0:1], 48")
    g(f"s_and_b32 s{sXCD}, s2, 7")
    g(f"s_lshr_b32 s{sR}, s2, 3")
    g(f"s_and_b32 s{sQ}, s{sR}, 1")
    g(f"s_lshr_b32 s{sPI}, s{sR}, 1")
    g(f"s_lshl_b32 s{sPI}, s{sPI}, 3")
    g(f"s_add_u32 s{sPI}, s{sPI}, s{sXCD}")
    g(f"s_cmp_ge_u32 s{sPI}, 126")
    g("s_cbranch_scc1 L_armer")
    g(f"s_cmp_ge_u32 s{sPI}, 63")
    g(f"s_cselect_b32 s{sB}, 1, 0")
    g(f"s_mul_i32 s{sT}, s{sB}, 63")
    g(f"s_sub_u32 s{sT}, s{sPI}, s{sT}")
    g("v_lshrrev_b32 v1, 6, v0")
    g("v_and_b32 v2, 63, v0")
    g(f"v_readfirstlane_b32 s{sWV}, v1")
    g(f"s_mul_i32 s{sXB}, s{sB}, 16000")
    g(f"s_mul_i32 s{sT0}, s{sT}, 254")
    g(f"s_add_u32 s{sXB}, s{sXB}, s{sT0}")
    g(f"s_lshl_b32 s{sXB}, s{sXB}, 9")
    g(f"s_mul_i32 s{sOB}, s{sB}, 7999")
    g(f"s_mul_i32 s{sT0}, s{sT}, 127")
    g(f"s_add_u32 s{sOB}, s{sOB}, s{sT0}")
    g(f"s_lshl_b32 s{sOB}, s{sOB}, 9")
    g(f"s_lshl_b32 s{sT1}, s{sQ}, 8")
    g(f"s_add_u32 s{sOB}, s{sOB}, s{sT1}")
    g(f"s_sub_u32 s{sLIM}, 7999, s{sT0}")
    g(f"s_min_u32 s{sLIM}, s{sLIM}, 127")
    g(f"s_lshl_b32 s{sGRP}, s{sB}, 1")
    g(f"s_add_u32 s{sGRP}, s{sGRP}, s{sQ}")
    g(f"s_cmp_ge_u32 s{sWV}, 4")
    g("s_cbranch_scc1 L_loader")

    def common_srds():
        srd(SGA, 8, 9, 512)
        srd(SBE, 10, 11, 512)
        srd(SO, 12, 13, 8190976)
        srd(SD, 14, 15, 256)
        g(f"s_lshl_b32 s{sT0}, s{sGRP}, 16")
        g(f"s_add_u32 s{SG}, s16, s{sT0}")
        g(f"s_addc_u32 s{SG+1}, s17, 0")
        g(f"s_and_b32 s{SG+1}, s{SG+1}, 0xffff")
        g(f"s_mov_b32 s{SG+2}, {63*1024}")
        g(f"s_mov_b32 s{SG+3}, 0x00020000")
        if stamps:
            g(f"s_add_u32 s{SST}, s16, 0x100000")
            g(f"s_addc_u32 s{SST+1}, s17, 0")
            g(f"s_and_b32 s{SST+1}, s{SST+1}, 0xffff")
            g(f"s_mov_b32 s{SST+2}, 0x10000")
            g(f"s_mov_b32 s{SST+3}, 0x00020000")
            g(f"s_lshl_b32 s{sT0}, s2, 8")
            g(f"s_lshr_b32 s{sT1}, s{sWV}, 2")
            g(f"s_lshl_b32 s{sT1}, s{sT1}, 7")
            g(f"s_add_u32 s{sT0}, s{sT0}, s{sT1}")
            g(f"v_mov_b32 v129, s{sT0}")
            g("v_and_b32 v128, 0xff, v0")
            g("v_cmp_ne_u32 vcc, 0, v128")
            g("v_mov_b32 v128, 0x40000000")
            g("s_nop 1")
            g("v_cndmask_b32 v129, v129, v128, vcc")

    vAa = [[12 + p * 4 + ks for ks in range(4)] for p in range(3)]
    vBa = [24, 25]
    FR = [32, 48]
    ACC = 64

    def T(mt, nt):
        return ACC + (mt * 2 + nt) * 16

    g.c("---- compute wave setup")
    if stamps:
        g(f"s_memrealtime s[{sTS+4}:{sTS+5}]")
    if opts.get("prio", False):
        g("s_setprio 3")
    g(f"s_lshr_b32 s{sT0}, s{sWV}, 1")
    g(f"s_and_b32 s{sT1}, s{sWV}, 1")
    g(f"s_lshl_b32 s{sT2}, s{sT0}, 6")
    g("v_and_b32 v3, 31, v2")
    g("v_lshrrev_b32 v8, 5, v2")
    g(f"v_add_u32 v9, s{sT2}, v3")
    for v in range(2):
        if v == 1:
            g("v_add_u32 v9, 1, v9")
        g("v_bfe_u32 v10, v9, 1, 3")
        g("v_xor_b32 v10, v10, v8")
        g("v_lshlrev_b32 v10, 4, v10")
        g(f"v_lshl_add_u32 v{4+v}, v9, 7, v10")
    g("v_add_u32 v6, 0x4000, v4")
    g(f"s_cmp_eq_u32 s{sQ}, 0")
    g("s_cselect_b64 vcc, -1, 0")
    g(f"v_cndmask_b32 v{vAa[0][0]}, v6, v4, vcc")
    g(f"v_cndmask_b32 v{vAa[1][0]}, v4, v5, vcc")
    g(f"v_cndmask_b32 v{vAa[2][0]}, v5, v6, vcc")
    for p in range(3):
        for ks in range(1, 4):
            g(f"v_xor_b32 v{vAa[p][ks]}, {ks*32}, v{vAa[p][0]}")
    g("v_bfe_u32 v9, v2, 2, 2")
    g("v_lshl_add_u32 v10, v8, 3, v9")
    g("v_lshlrev_b32 v10, 8, v10")
    g("v_bfe_u32 v11, v2, 4, 1")
    g("v_lshl_add_u32 v10, v11, 5, v10")
    g("v_and_b32 v11, 3, v2")
    g("v_lshl_add_u32 v10, v11, 3, v10")
    g(f"s_lshl_b32 s{sT2}, s{sT1}, 1")
    g(f"v_xor_b32 v11, s{sT2}, v9")
    g("v_lshl_add_u32 v10, v11, 6, v10")
    g(f"v_add_u32 v{vBa[0]}, 0x10000, v10")
    g(f"v_xor_b32 v{vBa[1]}, 64, v{vBa[0]}")
    for i in range(64):
        g(f"v_mov_b32 v{ACC+i}, 0")
    g("s_waitcnt lgkmcnt(0)")
    common_srds()
    if stamps:
        g(f"v_mov_b32 v128, s{sTS+4}")
        g(f"buffer_store_dword v128, v129, s[{SST}:{SST+3}], 0 offen")

    def rd(st, pos, ks, which):
        if opts.get("noread"):
            return
        f = FR[st]
        if which in (0, 5):
            mt = 0 if which == 0 else 1
            g(f"ds_read_b128 v[{f+mt*4}:{f+mt*4+3}], v{vAa[pos][ks]} offset:{mt*4096}")
        else:
            nt, j = (which - 1) >> 1, (which - 1) & 1
            r = f + 8 + nt * 4 + j * 2
            g(f"ds_read_b64_tr_b16 v[{r}:{r+1}], v{vBa[nt]} offset:{pos*16384+ks*4096+j*1024}")

    def mf(st, mt, nt):
        if opts.get("nomfma"):
            return
        f = FR[st]
        t = T(mt, nt)
        g(f"v_mfma_f32_32x32x16_bf16 v[{t}:{t+15}], v[{f+mt*4}:{f+mt*4+3}], v[{f+8+nt*4}:{f+8+nt*4+3}], v[{t}:{t+15}]")

    g(f"s_mov_b32 s{sI}, 0")
    g("s_barrier")
    stamp(1)
    for wch in range(6):
        rd(0, 0, 0, wch)
    g.lab("L_loop")
    for pos in range(3):
        for ks in range(4):
            st = (pos * 4 + ks) & 1
            last = ks == 3
            npos, nks = ((pos + 1) % 3, 0) if last else (pos, ks + 1)
            g("s_waitcnt lgkmcnt(3)")
            mf(st, 0, 0)
            if last:
                if pos == 2:
                    for p in range(3):
                        for k2 in range(4):
                            g(f"v_xor_b32 v{vAa[p][k2]}, 0x8000, v{vAa[p][k2]}")
                    for nt in range(2):
                        g(f"v_xor_b32 v{vBa[nt]}, 0xc000, v{vBa[nt]}")
                g("s_waitcnt lgkmcnt(0)")
                g("s_barrier")
            rd(st ^ 1, npos, nks, 0)
            rd(st ^ 1, npos, nks, 1)
            if not last:
                g("s_waitcnt lgkmcnt(3)")
            mf(st, 0, 1)
            rd(st ^ 1, npos, nks, 2)
            rd(st ^ 1, npos, nks, 3)
            if not last:
                g("s_waitcnt lgkmcnt(4)")
            mf(st, 1, 0)
            rd(st ^ 1, npos, nks, 4)
            rd(st ^ 1, npos, nks, 5)
            mf(st, 1, 1)
    g(f"s_add_u32 s{sI}, s{sI}, 1")
    g(f"s_cmp_lt_u32 s{sI}, 4")
    g("s_cbranch_scc1 L_loop")
    stamp(2)

    g.c("---- statistics")
    g(f"s_lshr_b32 s{sT0}, s{sWV}, 1")
    g(f"s_and_b32 s{sT1}, s{sWV}, 1")
    g(f"s_lshl_b32 s{sT2}, s{sT0}, 6")
    g(f"s_add_u32 s{sT2}, s{sT2}, 56")
    g(f"v_lshl_add_u32 v9, v8, 2, s{sT2}")
    g(f"s_lshl_b32 s{sT2}, s{sT1}, 9")
    g(f"v_lshl_add_u32 v10, v2, 3, s{sT2}")
    g("v_add_u32 v11, 0x10000, v10")
    g("s_waitcnt lgkmcnt(0)")
    g("s_nop 5")
    acc_s = {}
    for nt in range(2):
        sa, sb, qa, qb = 32 + nt * 8, 34 + nt * 8, 36 + nt * 8, 38 + nt * 8
        acc_s[nt] = (sa, sb, qa, qb)
        prs = [T(0, nt) + 2 * k for k in range(8)]
        g(f"v_pk_add_f32 v[{sa}:{sa+1}], v[{prs[0]}:{prs[0]+1}], v[{prs[2]}:{prs[2]+1}]")
        g(f"v_pk_add_f32 v[{sb}:{sb+1}], v[{prs[1]}:{prs[1]+1}], v[{prs[3]}:{prs[3]+1}]")
        g(f"v_pk_mul_f32 v[{qa}:{qa+1}], v[{prs[0]}:{prs[0]+1}], v[{prs[0]}:{prs[0]+1}]")
        g(f"v_pk_mul_f32 v[{qb}:{qb+1}], v[{prs[1]}:{prs[1]+1}], v[{prs[1]}:{prs[1]+1}]")
        for k in range(2, 8):
            p = prs[k]
            q = qa if k % 2 == 0 else qb
            s = sa if k % 2 == 0 else sb
            if k >= 4:
                g(f"v_pk_add_f32 v[{s}:{s+1}], v[{s}:{s+1}], v[{p}:{p+1}]")
            g(f"v_pk_fma_f32 v[{q}:{q+1}], v[{p}:{p+1}], v[{p}:{p+1}], v[{q}:{q+1}]")
    for i in range(1, 4):
        g(f"v_add_u32 v26, {i}, v9")
        g(f"v_cmp_gt_u32 vcc, s{sLIM}, v26")
        g("s_nop 1")
        for nt in range(2):
            r = T(1, nt) + 12 + i
            g(f"v_cndmask_b32 v{r}, 0, v{r}, vcc")
    for nt in range(2):
        sa, sb, qa, qb = acc_s[nt]
        prs = [T(1, nt) + 2 * k for k in range(8)]
        for k in range(8):
            p = prs[k]
            q = qa if k % 2 == 0 else qb
            s = sa if k % 2 == 0 else sb
            g(f"v_pk_add_f32 v[{s}:{s+1}], v[{s}:{s+1}], v[{p}:{p+1}]")
            g(f"v_pk_fma_f32 v[{q}:{q+1}], v[{p}:{p+1}], v[{p}:{p+1}], v[{q}:{q+1}]")
        g(f"v_pk_add_f32 v[{sa}:{sa+1}], v[{sa}:{sa+1}], v[{sb}:{sb+1}]")
        g(f"v_pk_add_f32 v[{qa}:{qa+1}], v[{qa}:{qa+1}], v[{qb}:{qb+1}]")
    g("v_add_f32 v48, v32, v33")
    g("v_add_f32 v49, v40, v41")
    g("v_add_f32 v50, v36, v37")
    g("v_add_f32 v51, v44, v45")
    g("s_nop 1")
    g("v_permlane32_swap_b32 v48, v49")
    g("v_permlane32_swap_b32 v50, v51")
    g("s_nop 1")
    g("v_add_f32 v52, v48, v49")
    g("v_add_f32 v53, v50, v51")
    g(f"s_cmp_eq_u32 s{sT0}, 0")
    g("s_cbranch_scc1 L_wm0a")
    g("ds_write_b64 v11, v[52:53]")
    g("s_waitcnt lgkmcnt(0)")
    g.lab("L_wm0a")
    g("s_barrier")
    g(f"s_cmp_lg_u32 s{sT0}, 0")
    g("s_cbranch_scc1 L_wm1b")
    g("ds_read_b64 v[54:55], v11")
    g(f"s_lshl_b32 s{sT2}, s{sT}, 10")
    g("v_mov_b32 v56, 0x7fc00000")
    g("s_waitcnt lgkmcnt(0)")
    g("v_pk_add_f32 v[52:53], v[52:53], v[54:55]")
    g("v_cmp_eq_u32 vcc, -1, v52")
    g("s_nop 1")
    g("v_cndmask_b32 v52, v52, v56, vcc")
    g("v_cmp_eq_u32 vcc, -1, v53")
    g("s_nop 1")
    g("v_cndmask_b32 v53, v53, v56, vcc")
    g(f"buffer_store_dwordx2 v[52:53], v10, s[{SG}:{SG+3}], s{sT2} offen sc1")
    g.lab("L_wm1b")
    stamp(3)
    g.c("---- transpose the accumulators through LDS (fp32, column-major, swizzled)")
    g("v_and_b32 v3, 31, v2")
    g("v_and_b32 v9, 7, v3")
    g("v_bfe_u32 v10, v3, 3, 2")
    g("v_lshlrev_b32 v10, 2, v10")
    g("v_xor_b32 v9, v9, v10")
    g("v_xor_b32 v9, v9, v8")
    g("v_lshlrev_b32 v9, 4, v9")
    g("v_lshl_add_u32 v9, v3, 8, v9")
    g(f"s_lshl_b32 s{sT2}, s{sWV}, 14")
    g(f"v_add_u32 v9, s{sT2}, v9")
    for mt in range(2):
        for gq in range(4):
            x = (2 * gq + 8 * mt) * 16
            if x:
                g(f"v_xor_b32 v10, {x}, v9")
                a = 10
            else:
                a = 9
            for nt in range(2):
                r = T(mt, nt) + gq * 4
                g(f"ds_write_b128 v{a}, v[{r}:{r+3}] offset:{nt*8192}")
    g("s_branch L_join")

    g.lab("L_loader")
    g(f"s_sub_u32 s{sT3}, s{sWV}, 4")
    g("v_lshrrev_b32 v3, 3, v2")
    g(f"s_lshl_b32 s{sT0}, s{sT3}, 5")
    g(f"v_add_u32 v3, s{sT0}, v3")
    g("v_lshlrev_b32 v3, 10, v3")
    g("v_lshrrev_b32 v4, 4, v2")
    g("v_and_b32 v6, 7, v2")
    g("v_xor_b32 v5, v4, v6")
    g("v_lshl_add_u32 v16, v5, 4, v3")
    g("v_xor_b32 v17, 64, v16")
    g(f"v_add_u32 v17, {8192-1024}, v17")
    g(f"v_add_u32 v18, {2*(8192-1024)}, v16")
    g(f"v_add_u32 v19, {2*(8192-1024)}, v17")
    g(f"s_lshl_b32 s{sT0}, s{sT3}, 4")
    g(f"v_add_u32 v3, s{sT0}, v4")
    g("v_lshlrev_b32 v3, 9, v3")
    g("v_lshlrev_b32 v5, 2, v4")
    g("v_and_b32 v6, 15, v2")
    g("v_xor_b32 v5, v5, v6")
    g("v_lshl_add_u32 v3, v5, 4, v3")
    g(f"s_lshl_b32 s{sT0}, s{sQ}, 8")
    g(f"v_add_u32 v20, s{sT0}, v3")
    for j in range(1, 4):
        g(f"v_add_u32 v{20+j}, {j*(2048-1024)}, v20")
    g(f"s_lshl_b32 s{sLB}, s{sT3}, 12")
    g(f"s_mul_i32 s{sT0}, s{sR}, 12288")
    g(f"s_mul_i32 s{sT1}, s{sT3}, 3072")
    g(f"s_add_u32 s{sT2}, s{sT0}, s{sT1}")
    g("v_lshlrev_b32 v3, 4, v2")
    g(f"s_lshr_b32 s{sT0}, s{sR}, 1")
    if not opts.get("rot", True):
        g(f"s_mov_b32 s{sT0}, 0")
    for i in range(4):
        g(f"s_add_u32 s{sT1}, s{sT0}, {i}")
        g(f"s_and_b32 s{sT1}, s{sT1}, 3")
        g(f"s_lshl_b32 s{sWC+i}, s{sT1}, 15")
        g(f"s_lshl_b32 s{sT1}, s{sT1}, 7")
        g(f"s_add_u32 s{sXC+i}, s{sXB}, s{sT1}")
    g("s_waitcnt lgkmcnt(0)")
    srd(SX, 4, 5, 16384000)
    srd(SW, 6, 7, 393216)
    wpf = opts.get("wpf", True)
    if wpf:
        for u in range(3):
            g(f"buffer_load_dwordx4 v[{32+4*u}:{35+4*u}], v3, s[{SW}:{SW+3}], s{sT2} offen offset:{u*1024}")
    g(f"s_lshr_b32 s{sT0}, s{sR}, 2")
    g(f"s_and_b32 s{sT0}, s{sT0}, 2")
    g(f"s_or_b32 s{sT0}, s{sT0}, s{sQ}")
    for role in range(1, 4):
        g(f"s_cmp_eq_u32 s{sT0}, {role}")
        g(f"s_cbranch_scc1 L_role{role}")

    def issue(q, c, kind):
        if opts.get("noload"):
            return
        if kind in "CH":
            pl = q if kind == "C" else 1 - q
            p = pol(xcpol if kind == "C" else xhpol)
            g(f"s_add_u32 m0, s{sLB}, {(c&1)*32768 + pl*16384}")
            g(f"s_add_u32 s{sT0}, s{sXC+c}, {pl*512}")
            for j in range(4):
                g(f"buffer_load_dwordx4 v{16+j}, s[{SX}:{SX+3}], s{sT0} offen offset:{j*1024}{p} lds")
        else:
            pos = int(kind)
            tap = TAPS[q][pos]
            g(f"s_add_u32 m0, s{sLB}, {65536 + (c&1)*49152 + pos*16384}")
            g(f"s_add_u32 s{sT0}, s{sWC+c}, {tap*131072}")
            for j in range(4):
                g(f"buffer_load_dwordx4 v{20+j}, s[{SW}:{SW+3}], s{sT0} offen offset:{j*1024} lds")

    for role in range(4):
        q = role & 1
        if role:
            g.lab(f"L_role{role}")
        per = streams[role].split(".")
        if len(per) == 1:
            per = per * 4
        blocks = [(c, k) for c in range(4) for k in per[c]]
        assert sorted(blocks) == sorted((c, k) for c in range(4) for k in "CH012")
        idx = {b: i for i, b in enumerate(blocks)}
        need = [max(idx[(s // 3, XNEED[q][s % 3])], idx[(s // 3, str(s % 3))]) for s in range(12)]

        def last_use(c, k):
            if k in "CH":
                return 3 * c + max(p for p in range(3) if XNEED[q][p] == k)
            return 3 * c + int(k)
        issued = 0
        first = True
        extra = 0
        for s in range(12):
            target = min(max(need[:s + 1]) + R, 19)
            while issued <= target:
                c, k = blocks[issued]
                if c >= 2 and last_use(c - 2, k) > s - 2:
                    break
                issue(q, c, k)
                issued += 1
            if first:
                common_srds()
                stamp(0)
                if stamps:
                    extra += 1
                first = False
            assert issued > need[s], (role, s, issued, need)
            if issued == 20 and extra < 100:
                g(f"s_lshl_b32 s{sT0}, s{sGRP}, 6")
                g(f"v_mov_b32 v24, s{sT0}")
                g(f"buffer_load_dword v5, v24, s[{SD}:{SD+3}], 0 offen sc1")
                extra = 100
                flag_after = 19
            n_after = 4 * (issued - 1 - need[s])
            if extra >= 100:
                n_after += 1
            elif extra and s == 0:
                n_after += 1
            if opts.get("noload"):
                n_after = 63
            g(f"s_waitcnt vmcnt({min(n_after, 63)})")
            if s == 11:
                stamp(1)
            g("s_barrier")
        if role < 3:
            g("s_branch L_ljoin")
    g.lab("L_ljoin")
    g("s_barrier")
    g.c("wait until every workgroup of the group has armed its slot")
    g(f"s_mov_b32 s{sSPIN}, 0")
    g.lab("L_flagpoll")
    g("s_waitcnt vmcnt(0)")
    g("v_cmp_eq_u32 vcc, 0, v5")
    g(f"s_add_u32 s{sSPIN}, s{sSPIN}, 1")
    g(f"s_cmp_ge_u32 s{sSPIN}, {SPINMAX}")
    g("s_cbranch_scc1 L_noflagwait")
    g("s_cbranch_vccz L_noflagwait")
    g("s_sleep 16")
    g(f"buffer_load_dword v5, v24, s[{SD}:{SD+3}], 0 offen sc1")
    g("s_branch L_flagpoll")
    g.lab("L_noflagwait")
    stamp(2)
    g("s_barrier")

    g.lab("L_join")
    GV = 96
    g("v_and_b32 v4, 7, v2")
    g("v_lshrrev_b32 v3, 3, v2")
    g(f"s_lshl_b32 s{sT0}, s{sWV}, 7")
    g(f"v_lshl_add_u32 v7, v4, 4, s{sT0}")
    g("v_lshl_add_u32 v12, v3, 10, v7")
    g("v_lshrrev_b32 v5, 2, v7")
    g(f"s_lshl_b32 s{sT0}, s{sQ}, 8")
    g(f"buffer_load_dword v30, v5, s[{SGA}:{SGA+3}], s{sT0} offen")
    g(f"buffer_load_dword v31, v5, s[{SBE}:{SBE+3}], s{sT0} offen")
    g("v_add_u32 v11, 0x14000, v7")
    g("s_waitcnt lgkmcnt(0)")
    g("s_barrier")
    g(f"s_mov_b32 s{sSPIN}, 0")
    for k in range(8):
        g(f"s_mov_b32 s{sT1}, {k*8192}")
        g(f"buffer_load_dwordx4 v[{GV+4*k}:{GV+4*k+3}], v12, s[{SG}:{SG+3}], s{sT1} offen sc1")
    g(f"s_and_b32 s{sT0}, s{sWV}, 3")
    g(f"s_lshr_b32 s{sT1}, s{sWV}, 2")
    g(f"s_lshl_b32 s{sT2}, s{sT1}, 3")
    g(f"v_add_u32 v3, s{sT2}, v3")
    g("v_and_b32 v5, 3, v2")
    g("v_lshlrev_b32 v5, 2, v5")
    g("v_xor_b32 v5, v5, v3")
    g("v_lshlrev_b32 v5, 4, v5")
    g("v_lshl_add_u32 v5, v4, 11, v5")
    g(f"s_lshl_b32 s{sT2}, s{sT0}, 14")
    g(f"v_add_u32 v5, s{sT2}, v5")
    D = 64
    for e in range(8):
        if e:
            g(f"v_xor_b32 v6, {e*16}, v5")
            a = 6
        else:
            a = 5
        g(f"ds_read_b128 v[{D+4*e}:{D+4*e+3}], v{a} offset:{e*256}")
    g(f"s_lshr_b32 s{sT2}, s{sT0}, 1")
    g(f"s_lshl_b32 s{sT2}, s{sT2}, 6")
    g(f"v_lshl_add_u32 v6, v3, 2, s{sT2}")
    g(f"s_and_b32 s{sT2}, s{sT0}, 1")
    g(f"s_lshl_b32 s{sT3}, s{sT2}, 7")
    g(f"v_lshl_add_u32 v7, v4, 4, s{sT3}")
    g("v_mov_b32 v9, 0x40000000")
    for rho in range(4):
        g(f"v_add_u32 v8, {rho}, v6")
        g(f"v_cmp_gt_u32 vcc, s{sLIM}, v8")
        g(f"v_lshl_add_u32 v{13+rho}, v8, 9, v7")
        g("s_nop 0")
        g(f"v_cndmask_b32 v{13+rho}, v9, v{13+rho}, vcc")
    g(f"s_lshl_b32 s{sT3}, s{sT2}, 9")
    g(f"s_add_u32 s{sT3}, s{sT3}, 0x14000")
    g(f"v_lshl_add_u32 v17, v4, 6, s{sT3}")
    c0 = -2.0 * 1.4426950408889634 * 0.7978845608028654
    c1 = c0 * 0.044715
    g(f"v_mov_b32 v28, {f32bits(c1):#x}")
    g(f"v_mov_b32 v29, {f32bits(c0):#x}")
    g.lab("L_gpoll")
    g(f"s_mov_b32 s{sMASK}, 0")
    g("s_waitcnt vmcnt(0)")
    for k in range(8):
        b = GV + 4 * k
        g(f"v_max3_u32 v3, v{b}, v{b+1}, v{b+2}")
        g(f"v_max_u32 v3, v3, v{b+3}")
        g("v_cmp_eq_u32 vcc, -1, v3")
        g("s_cmp_lg_u64 vcc, 0")
        g(f"s_cselect_b32 s{sT0}, {1<<k}, 0")
        g(f"s_or_b32 s{sMASK}, s{sMASK}, s{sT0}")
    g("s_cbranch_scc0 L_gdone")
    g(f"s_add_u32 s{sSPIN}, s{sSPIN}, 1")
    g(f"s_cmp_ge_u32 s{sSPIN}, {SPINMAX}")
    g("s_cbranch_scc1 L_gdone")
    if int(opts.get("gsleep", 0)):
        g(f"s_sleep {int(opts.get('gsleep', 0))}")
    for k in range(8):
        g(f"s_bitcmp1_b32 s{sMASK}, {k}")
        g(f"s_cbranch_scc0 L_gskip{k}")
        g(f"s_mov_b32 s{sT1}, {k*8192}")
        g(f"buffer_load_dwordx4 v[{GV+4*k}:{GV+4*k+3}], v12, s[{SG}:{SG+3}], s{sT1} offen sc1")
        g.lab(f"L_gskip{k}")
    g("s_branch L_gpoll")
    g.lab("L_gdone")
    stamp(4)
    for step in (16, 8, 4):
        for a in range(GV, GV + step, 2):
            g(f"v_pk_add_f32 v[{a}:{a+1}], v[{a}:{a+1}], v[{a+step}:{a+step+1}]")
    g(f"s_mov_b32 s{sT0}, {f32bits(1.0/7999.0):#x}")
    g(f"s_mov_b32 s{sT1}, {f32bits(1e-5):#x}")
    for i in range(4):
        g(f"v_add_f32_dpp v{GV+4+i}, v{GV+i}, v{GV+i} row_ror:8 row_mask:0xf bank_mask:0xf")
    g("v_lshlrev_b32 v18, 16, v30")
    g("v_and_b32 v19, 0xffff0000, v30")
    for i in range(4):
        g(f"v_mov_b32 v{GV+i}, v{GV+4+i}")
    g("v_lshlrev_b32 v20, 16, v31")
    g("v_and_b32 v21, 0xffff0000, v31")
    for i in range(4):
        g(f"v_permlane16_swap_b32 v{GV+i}, v{GV+4+i}")
    g("s_nop 0")
    for a in (0, 2):
        g(f"v_pk_add_f32 v[{GV+a}:{GV+a+1}], v[{GV+a}:{GV+a+1}], v[{GV+4+a}:{GV+5+a}]")
    for i in range(4):
        g(f"v_mov_b32 v{GV+4+i}, v{GV+i}")
    g("s_nop 1")
    for i in range(4):
        g(f"v_permlane32_swap_b32 v{GV+i}, v{GV+4+i}")
    g("s_nop 0")
    for a in (0, 2):
        g(f"v_pk_add_f32 v[{GV+a}:{GV+a+1}], v[{GV+a}:{GV+a+1}], v[{GV+4+a}:{GV+5+a}]")
    for cidx in range(2):
        S, Q = GV + 2 * cidx, GV + 2 * cidx + 1
        g(f"v_mul_f32 v{S}, s{sT0}, v{S}")
        g(f"v_mul_f32 v{Q}, s{sT0}, v{Q}")
        g(f"v_fma_f32 v{Q}, -v{S}, v{S}, v{Q}")
        g(f"v_max_f32 v{Q}, 0, v{Q}")
        g(f"v_add_f32 v{Q}, s{sT1}, v{Q}")
        g(f"v_rsq_f32 v{Q}, v{Q}")
        g("s_nop 0")
        g(f"v_mul_f32 v{22+2*cidx}, v{18+cidx}, v{Q}")
        g(f"v_fma_f32 v{23+2*cidx}, -v{S}, v{22+2*cidx}, v{20+cidx}")
    g("s_mov_b64 exec, 0xff")
    g("ds_write_b128 v11, v[22:25]")
    g("s_mov_b64 exec, -1")
    P = 32
    g("s_waitcnt lgkmcnt(0)")
    g("s_barrier")
    for k in range(4):
        g(f"ds_read_b128 v[{P+4*k}:{P+4*k+3}], v17 offset:{k*16}")
    g("s_waitcnt lgkmcnt(0)")
    stamp(5)
    BC = "op_sel:[0,0,1] op_sel_hi:[1,0,1]"
    U = 96
    for rp in range(2):
        for e in range(8):
            d = D + 4 * e + 2 * rp
            g(f"v_pk_fma_f32 v[{d}:{d+1}], v[{d}:{d+1}], v[{P+2*e}:{P+2*e+1}], v[{P+2*e}:{P+2*e+1}] {BC}")
        for e in range(8):
            d = D + 4 * e + 2 * rp
            u = U + 2 * e
            g(f"v_pk_mul_f32 v[{u}:{u+1}], v[{d}:{d+1}], v[{d}:{d+1}]")
        for e in range(8):
            u = U + 2 * e
            g(f"v_pk_fma_f32 v[{u}:{u+1}], v[{u}:{u+1}], v[28:29], v[28:29] {BC}")
        for e in range(8):
            d = D + 4 * e + 2 * rp
            u = U + 2 * e
            g(f"v_pk_mul_f32 v[{u}:{u+1}], v[{u}:{u+1}], v[{d}:{d+1}]")
        for e in range(16):
            g(f"v_exp_f32 v{U+e}, v{U+e}")
        for e in range(8):
            u = U + 2 * e
            g(f"v_pk_add_f32 v[{u}:{u+1}], v[{u}:{u+1}], 1.0 op_sel_hi:[1,0]")
        for e in range(16):
            g(f"v_rcp_f32 v{U+e}, v{U+e}")
        for e in range(8):
            d = D + 4 * e + 2 * rp
            u = U + 2 * e
            g(f"v_pk_mul_f32 v[{d}:{d+1}], v[{u}:{u+1}], v[{d}:{d+1}]")
        for r2 in range(2):
            rho = 2 * rp + r2
            O = 112 + 4 * rho
            for k in range(4):
                g(f"v_cvt_pk_bf16_f32 v{O+k}, v{D+4*(2*k)+rho}, v{D+4*(2*k+1)+rho}")
            g(f"buffer_store_dwordx4 v[{O}:{O+3}], v{13+rho}, s[{SO}:{SO+3}], s{sOB} offen{pol(opol)}")
    if stamps:
        g("s_waitcnt vmcnt(0)")
        stamp(6)
    g.lab("L_end")
    g("s_endpgm")
    g.c("---- the four workgroups without a tile arm the slots of one group each")
    g.lab("L_armer")
    g(f"s_sub_u32 s{sGRP}, s{sXCD}, 6")
    g(f"s_lshl_b32 s{sGRP}, s{sGRP}, 1")
    g(f"s_add_u32 s{sGRP}, s{sGRP}, s{sQ}")
    g("v_lshlrev_b32 v3, 4, v0")
    for i in range(4, 8):
        g(f"v_mov_b32 v{i}, -1")
    g("s_waitcnt lgkmcnt(0)")
    srd(SD, 14, 15, 256)
    g(f"s_lshl_b32 s{sT0}, s{sGRP}, 16")
    g(f"s_add_u32 s{SG}, s16, s{sT0}")
    g(f"s_addc_u32 s{SG+1}, s17, 0")
    g(f"s_and_b32 s{SG+1}, s{SG+1}, 0xffff")
    g(f"s_mov_b32 s{SG+2}, {63*1024}")
    g(f"s_mov_b32 s{SG+3}, 0x00020000")
    for k in range(8):
        g(f"s_mov_b32 s{sT1}, {k*8192}")
        g(f"buffer_store_dwordx4 v[4:7], v3, s[{SG}:{SG+3}], s{sT1} offen sc1")
    g("s_waitcnt vmcnt(0)")
    g("s_barrier")
    g("v_cmp_eq_u32 vcc, 0, v0")
    g(f"s_lshl_b32 s{sT0}, s{sGRP}, 6")
    g(f"v_mov_b32 v8, s{sT0}")
    g("v_mov_b32 v9, 1")
    g("s_and_saveexec_b64 s[4:5], vcc")
    g("s_cbranch_execz L_armend")
    g(f"buffer_store_dword v9, v8, s[{SD}:{SD+3}], 0 offen sc1")
    g.lab("L_armend")
    g("s_endpgm")

    out = HEADER
    out += "; @launch grid=(256,1,1) block=(512,1,1) lds=163840\n"
    out += '.amdgcn_target "amdgcn-amd-amdhsa--gfx950"\n.text\n'
    out += f".globl {NAME}_kernel\n.p2align 8\n.type {NAME}_kernel,@function\n{NAME}_kernel:\n"
    out += "\n".join(g.L) + "\n"
    nv = 136 if stamps else 128
    out += f""".section .rodata,"a"
.p2align 6
.amdhsa_kernel {NAME}_kernel
  .amdhsa_next_free_vgpr {nv}
  .amdhsa_next_free_sgpr 96
  .amdhsa_accum_offset {nv}
  .amdhsa_group_segment_fixed_size 0
  .amdhsa_kernarg_size 56
  .amdhsa_user_sgpr_count 2
  .amdhsa_user_sgpr_kernarg_segment_ptr 1
  .amdhsa_system_sgpr_workgroup_id_x 1
  .amdhsa_float_denorm_mode_32 3
.end_amdhsa_kernel
"""
    return out


if __name__ == "__main__":
    opts = {}
    outp = f"cdna_kernels/{NAME}.s"
    for a in sys.argv[1:]:
        if a.startswith("-o="):
            outp = a[3:]
        else:
            k, _, v = a.partition("=")
            if v in ("0", "1") and k not in ("R", "gsleep"):
                v = bool(int(v))
            opts[k] = v
    open(outp, "w").write(build(opts))
    print("wrote", outp)
```

```python
import sys
import struct

NAME = "standalone__self_sup_conv_stem_wavlm__speech"

HEADER = """; Kernarg layout for this problem (56 bytes, ptrs only, base s[0:1]):
;   offset  48: d_ws      268435456 bytes workspace
"""


def f32bits(x):
    return struct.unpack("<I", struct.pack("<f", x))[0]


class Gen:
    def __init__(self, opts):
        self.o = opts
        self.L = []

    def __call__(self, s):
        self.L.append("    " + s)

    def lab(self, s):
        self.L.append(s + ":")

    def c(self, s):
        self.L.append("    ; " + s)


TAPS = {0: [0, 2, 1], 1: [1, 0, 2]}
XNEED = {0: ["C", "C", "H"], 1: ["C", "H", "H"]}


def build(opts):
    g = Gen(opts)
    xcpol = opts.get("xcpol", "")
    xhpol = opts.get("xhpol", "")
    opol = opts.get("opol", "nt")
    stamps = opts.get("stamps", False)
    R = int(opts.get("R", 3))
    SPINMAX = "0x8000"
    streams = opts.get("streams", "C01H2,C0H12,01C2H,01CH2").split(",")
    pol = lambda p: (" " + p.replace("+", " ")) if p else ""

    SX, SW, SO, SG, SD, SGA, SBE = 20, 24, 28, 32, 36, 40, 44
    sXCD, sR, sQ, sPI, sB, sT, sWV = 50, 51, 52, 53, 54, 55, 56
    sXB, sOB, sLIM, sGRP = 57, 58, 59, 60
    sI, sT0, sT1, sT2, sT3 = 61, 62, 63, 64, 65
    sFI = 66
    sLB = 67
    sMASK, sNEW = 68, 69
    sSPIN = 72
    sXC, sWC = 86, 90
    SST = 76
    sTS = 80
    VS = 160

    def srd(base, lo, hi, nbytes):
        g(f"s_mov_b32 s{base}, s{lo}")
        g(f"s_and_b32 s{base+1}, s{hi}, 0xffff")
        g(f"s_mov_b32 s{base+2}, {nbytes}")
        g(f"s_mov_b32 s{base+3}, 0x00020000")

    def stamp(slot):
        if not stamps:
            return
        g(f"s_memrealtime s[{sTS}:{sTS+1}]")
        if slot in (1, 2):
            g(f"s_memtime s[{sTS+2}:{sTS+3}]")
        g("s_waitcnt lgkmcnt(0)")
        g(f"v_mov_b32 v{VS}, s{sTS}")
        g(f"buffer_store_dword v{VS}, v{VS+1}, s[{SST}:{SST+3}], 0 offen offset:{slot*4}")
        if slot in (1, 2):
            g(f"v_mov_b32 v{VS}, s{sTS+2}")
            g(f"buffer_store_dword v{VS}, v{VS+1}, s[{SST}:{SST+3}], 0 offen offset:{(slot+7)*4}")

    g("s_cmp_ge_u32 s2, 256")
    g("s_cbranch_scc1 L_end")
    g("s_load_dwordx8 s[4:11], s[0:1], 0")
    g("s_load_dwordx4 s[12:15], s[0:1], 32")
    g("s_load_dwordx2 s[16:17], s[0:1], 48")
    g(f"s_and_b32 s{sXCD}, s2, 7")
    g(f"s_lshr_b32 s{sR}, s2, 3")
    g(f"s_and_b32 s{sQ}, s{sR}, 1")
    g(f"s_lshr_b32 s{sPI}, s{sR}, 1")
    g(f"s_lshl_b32 s{sPI}, s{sPI}, 3")
    g(f"s_add_u32 s{sPI}, s{sPI}, s{sXCD}")
    g(f"s_cmp_ge_u32 s{sPI}, 126")
    g("s_cbranch_scc1 L_armer")
    g(f"s_cmp_ge_u32 s{sPI}, 63")
    g(f"s_cselect_b32 s{sB}, 1, 0")
    g(f"s_mul_i32 s{sT}, s{sB}, 63")
    g(f"s_sub_u32 s{sT}, s{sPI}, s{sT}")
    g("v_lshrrev_b32 v1, 6, v0")
    g("v_and_b32 v2, 63, v0")
    g(f"v_readfirstlane_b32 s{sWV}, v1")
    g(f"s_mul_i32 s{sXB}, s{sB}, 16000")
    g(f"s_mul_i32 s{sT0}, s{sT}, 254")
    g(f"s_add_u32 s{sXB}, s{sXB}, s{sT0}")
    g(f"s_lshl_b32 s{sXB}, s{sXB}, 9")
    g(f"s_mul_i32 s{sOB}, s{sB}, 7999")
    g(f"s_mul_i32 s{sT0}, s{sT}, 127")
    g(f"s_add_u32 s{sOB}, s{sOB}, s{sT0}")
    g(f"s_lshl_b32 s{sOB}, s{sOB}, 9")
    g(f"s_lshl_b32 s{sT1}, s{sQ}, 8")
    g(f"s_add_u32 s{sOB}, s{sOB}, s{sT1}")
    g(f"s_sub_u32 s{sLIM}, 7999, s{sT0}")
    g(f"s_min_u32 s{sLIM}, s{sLIM}, 127")
    g(f"s_lshl_b32 s{sGRP}, s{sB}, 1")
    g(f"s_add_u32 s{sGRP}, s{sGRP}, s{sQ}")
    g(f"s_cmp_ge_u32 s{sWV}, 4")
    g("s_cbranch_scc1 L_loader")

    def common_srds():
        srd(SGA, 8, 9, 512)
        srd(SBE, 10, 11, 512)
        srd(SO, 12, 13, 8190976)
        srd(SD, 14, 15, 256)
        g(f"s_lshl_b32 s{sT0}, s{sGRP}, 16")
        g(f"s_add_u32 s{SG}, s16, s{sT0}")
        g(f"s_addc_u32 s{SG+1}, s17, 0")
        g(f"s_and_b32 s{SG+1}, s{SG+1}, 0xffff")
        g(f"s_mov_b32 s{SG+2}, {63*1024}")
        g(f"s_mov_b32 s{SG+3}, 0x00020000")
        if stamps:
            g(f"s_add_u32 s{SST}, s16, 0x100000")
            g(f"s_addc_u32 s{SST+1}, s17, 0")
            g(f"s_and_b32 s{SST+1}, s{SST+1}, 0xffff")
            g(f"s_mov_b32 s{SST+2}, 0x10000")
            g(f"s_mov_b32 s{SST+3}, 0x00020000")
            g(f"s_lshl_b32 s{sT0}, s2, 8")
            g(f"s_lshr_b32 s{sT1}, s{sWV}, 2")
            g(f"s_lshl_b32 s{sT1}, s{sT1}, 7")
            g(f"s_add_u32 s{sT0}, s{sT0}, s{sT1}")
            g(f"v_mov_b32 v{VS+1}, s{sT0}")
            g(f"v_and_b32 v{VS}, 0xff, v0")
            g(f"v_cmp_ne_u32 vcc, 0, v{VS}")
            g(f"v_mov_b32 v{VS}, 0x40000000")
            g("s_nop 1")
            g(f"v_cndmask_b32 v{VS+1}, v{VS+1}, v{VS}, vcc")

    vAa = [[12 + p * 2 + ks for ks in range(2)] for p in range(3)]
    vBa = [20, 21, 22, 23]
    FA = [32, 128]
    FB = [48, 144]
    ACC = 64

    def T(mt, nt):
        return ACC + (mt * 4 + nt) * 4

    g.c("---- compute wave setup")
    if stamps:
        g(f"s_memrealtime s[{sTS+4}:{sTS+5}]")
    if opts.get("prio", False):
        g("s_setprio 3")
    g(f"s_lshr_b32 s{sT0}, s{sWV}, 1")
    g(f"s_and_b32 s{sT1}, s{sWV}, 1")
    g(f"s_lshl_b32 s{sT2}, s{sT0}, 6")
    g("v_and_b32 v3, 15, v2")
    g("v_lshrrev_b32 v8, 4, v2")
    g(f"v_add_u32 v9, s{sT2}, v3")
    for v in range(2):
        if v == 1:
            g("v_add_u32 v9, 1, v9")
        g("v_and_b32 v10, 6, v9")
        g("v_xor_b32 v10, v10, v8")
        g("v_lshlrev_b32 v10, 4, v10")
        g(f"v_lshl_add_u32 v{4+v}, v9, 7, v10")
    g("v_add_u32 v6, 0x4000, v4")
    g(f"s_cmp_eq_u32 s{sQ}, 0")
    g("s_cselect_b64 vcc, -1, 0")
    g(f"v_cndmask_b32 v{vAa[0][0]}, v6, v4, vcc")
    g(f"v_cndmask_b32 v{vAa[1][0]}, v4, v5, vcc")
    g(f"v_cndmask_b32 v{vAa[2][0]}, v5, v6, vcc")
    for p in range(3):
        g(f"v_xor_b32 v{vAa[p][1]}, 64, v{vAa[p][0]}")
    g("v_bfe_u32 v9, v2, 2, 2")
    g("v_lshl_add_u32 v10, v8, 3, v9")
    g("v_lshlrev_b32 v10, 8, v10")
    g("v_and_b32 v11, 3, v2")
    g("v_lshl_add_u32 v10, v11, 3, v10")
    g("v_and_b32 v11, 1, v8")
    g("v_lshl_or_b32 v11, v11, 2, v9")
    g(f"s_lshl_b32 s{sT2}, s{sT1}, 2")
    g(f"v_xor_b32 v11, s{sT2}, v11")
    g("v_lshl_add_u32 v10, v11, 5, v10")
    g(f"v_add_u32 v{vBa[0]}, 0x10000, v10")
    for nt in range(1, 4):
        g(f"v_xor_b32 v{vBa[nt]}, {nt*32}, v{vBa[0]}")
    for i in range(64):
        g(f"v_mov_b32 v{ACC+i}, 0")
    g("s_waitcnt lgkmcnt(0)")
    common_srds()
    if stamps:
        g(f"v_mov_b32 v{VS}, s{sTS+4}")
        g(f"buffer_store_dword v{VS}, v{VS+1}, s[{SST}:{SST+3}], 0 offen")

    RORD = ["A0", "B0a", "B0b", "B1a", "B1b", "A1", "B2a", "B2b", "B3a", "B3b", "A2", "A3"]
    MORD = [(0, 0), (0, 1), (1, 0), (1, 1), (0, 2), (0, 3), (1, 2), (1, 3),
            (2, 0), (2, 1), (2, 2), (2, 3), (3, 0), (3, 1), (3, 2), (3, 3)]

    def rd(n, which):
        if opts.get("noread"):
            return
        st = n & 1
        pos, ks = divmod(n % 6, 2)
        if which[0] == "A":
            mt = int(which[1])
            r = FA[st] + 4 * mt
            g(f"ds_read_b128 v[{r}:{r+3}], v{vAa[pos][ks]} offset:{mt*2048}")
        else:
            nt, j = int(which[1]), "ab".index(which[2])
            r = FB[st] + 4 * nt + 2 * j
            g(f"ds_read_b64_tr_b16 v[{r}:{r+1}], v{vBa[nt]} offset:{pos*16384+ks*8192+j*1024}")

    def mf(n, mt, nt):
        if opts.get("nomfma"):
            return
        st = n & 1
        t = T(mt, nt)
        fa, fb = FA[st] + 4 * mt, FB[st] + 4 * nt
        g(f"v_mfma_f32_16x16x32_bf16 v[{t}:{t+3}], v[{fa}:{fa+3}], v[{fb}:{fb+3}], v[{t}:{t+3}]")
        pace = int(opts.get("pace", -1))
        if pace >= 0 and (mt * 4 + nt) % int(opts.get("pacemod", 1)) == 0:
            g(f"s_nop {pace}")

    def tog(regs, val):
        for r in regs:
            g(f"v_xor_b32 v{r}, {val:#x}, v{r}")

    BPOS = int(opts.get("bpos", 4))
    g(f"s_mov_b32 s{sI}, 0")
    g("s_barrier")
    stamp(1)
    for wh in RORD:
        rd(0, wh)
    g.lab("L_loop")
    queue = [(0, wh) for wh in RORD]
    for n in range(6):
        last = (n & 1) == 1
        pending = list(RORD)
        first_rd = BPOS if last else 0
        for i, (mt, nt) in enumerate(MORD):
            needs = {(n, f"A{mt}"), (n, f"B{nt}a"), (n, f"B{nt}b")}
            p_ = max((k for k, t in enumerate(queue) if t in needs), default=-1)
            if p_ >= 0:
                g(f"s_waitcnt lgkmcnt({len(queue) - 1 - p_})")
                del queue[:p_ + 1]
            mf(n, mt, nt)
            if last and i == BPOS - 1:
                if n == 5:
                    tog(vBa, 0xc000)
                g("s_waitcnt lgkmcnt(0)")
                del queue[:]
                g("s_barrier")
            if i >= first_rd - (1 if last else 0) and pending and not (last and i < BPOS - 1):
                k = 1
                rem = 16 - i
                k = -(-len(pending) // rem)
                for _ in range(k):
                    wh = pending.pop(0)
                    rd(n + 1, wh)
                    queue.append(((n + 1) % 6, wh))
            if i == 13 and n in (2, 4, 5):
                tog(vAa[{2: 0, 4: 1, 5: 2}[n]], 0x8000)
        assert not pending
    assert queue == [(0, wh) for wh in RORD][-len(queue):]
    g(f"s_add_u32 s{sI}, s{sI}, 1")
    g(f"s_cmp_lt_u32 s{sI}, 4")
    g("s_cbranch_scc1 L_loop")
    stamp(2)

    g.c("---- statistics")
    g(f"s_lshr_b32 s{sT0}, s{sWV}, 1")
    g(f"s_and_b32 s{sT1}, s{sWV}, 1")
    g(f"s_lshl_b32 s{sT2}, s{sT0}, 6")
    g(f"s_add_u32 s{sT2}, s{sT2}, 48")
    g(f"v_lshl_add_u32 v9, v8, 2, s{sT2}")
    g(f"s_lshl_b32 s{sT2}, s{sT1}, 9")
    g(f"v_lshl_add_u32 v10, v2, 3, s{sT2}")
    g("v_add_u32 v11, 0x10000, v10")
    g("s_waitcnt lgkmcnt(0)")
    for mt in range(4):
        if mt == 3:
            for i in range(1, 4):
                g(f"v_add_u32 v26, {i}, v9")
                g(f"v_cmp_gt_u32 vcc, s{sLIM}, v26")
                g("s_nop 1")
                for nt in range(4):
                    r = T(3, nt) + i
                    g(f"v_cndmask_b32 v{r}, 0, v{r}, vcc")
        for h2 in range(2):
            for nt in range(4):
                sa, qa = 32 + 4 * nt, 34 + 4 * nt
                p = T(mt, nt) + 2 * h2
                if mt == 0 and h2 == 0:
                    g(f"v_pk_mul_f32 v[{qa}:{qa+1}], v[{p}:{p+1}], v[{p}:{p+1}]")
                    continue
                if mt == 0 and h2 == 1:
                    g(f"v_pk_add_f32 v[{sa}:{sa+1}], v[{p-2}:{p-1}], v[{p}:{p+1}]")
                else:
                    g(f"v_pk_add_f32 v[{sa}:{sa+1}], v[{sa}:{sa+1}], v[{p}:{p+1}]")
                g(f"v_pk_fma_f32 v[{qa}:{qa+1}], v[{p}:{p+1}], v[{p}:{p+1}], v[{qa}:{qa+1}]")
    for nt in range(4):
        g(f"v_add_f32 v{48+nt}, v{32+4*nt}, v{33+4*nt}")
        g(f"v_add_f32 v{52+nt}, v{34+4*nt}, v{35+4*nt}")
    g("s_nop 0")
    for bse in (48, 52):
        g(f"v_permlane32_swap_b32 v{bse}, v{bse+2}")
        g(f"v_permlane32_swap_b32 v{bse+1}, v{bse+3}")
    g("s_nop 0")
    for bse in (48, 52):
        g(f"v_add_f32 v{bse}, v{bse}, v{bse+2}")
        g(f"v_add_f32 v{bse+1}, v{bse+1}, v{bse+3}")
    g("s_nop 1")
    for bse in (48, 52):
        g(f"v_permlane16_swap_b32 v{bse}, v{bse+1}")
    g("s_nop 0")
    g("v_add_f32 v53, v52, v53")
    g("v_add_f32 v52, v48, v49")
    g(f"s_cmp_eq_u32 s{sT0}, 0")
    g("s_cbranch_scc1 L_wm0a")
    g("ds_write_b64 v11, v[52:53]")
    g("s_waitcnt lgkmcnt(0)")
    g.lab("L_wm0a")
    g("s_barrier")
    g(f"s_cmp_lg_u32 s{sT0}, 0")
    g("s_cbranch_scc1 L_wm1b")
    g("ds_read_b64 v[54:55], v11")
    g(f"s_lshl_b32 s{sT2}, s{sT}, 10")
    g("v_mov_b32 v56, 0x7fc00000")
    g("s_waitcnt lgkmcnt(0)")
    g("v_pk_add_f32 v[52:53], v[52:53], v[54:55]")
    g("v_cmp_eq_u32 vcc, -1, v52")
    g("s_nop 1")
    g("v_cndmask_b32 v52, v52, v56, vcc")
    g("v_cmp_eq_u32 vcc, -1, v53")
    g("s_nop 1")
    g("v_cndmask_b32 v53, v53, v56, vcc")
    g(f"buffer_store_dwordx2 v[52:53], v10, s[{SG}:{SG+3}], s{sT2} offen sc1")
    g.lab("L_wm1b")
    stamp(3)
    g.c("---- transpose the accumulators through LDS (fp32, column-major, swizzled)")
    g("v_and_b32 v9, 7, v3")
    g("v_lshrrev_b32 v10, 3, v3")
    g("v_lshlrev_b32 v10, 2, v10")
    g("v_xor_b32 v9, v9, v10")
    g("v_xor_b32 v9, v9, v8")
    g("v_lshlrev_b32 v9, 4, v9")
    g("v_lshl_add_u32 v9, v3, 8, v9")
    g(f"s_lshl_b32 s{sT2}, s{sWV}, 14")
    g(f"v_add_u32 v9, s{sT2}, v9")
    for mt in range(4):
        for par in range(2):
            x = ((4 * mt) ^ (8 * par)) * 16
            if x:
                g(f"v_xor_b32 v10, {x}, v9")
                a = 10
            else:
                a = 9
            for nt in (par, par + 2):
                r = T(mt, nt)
                g(f"ds_write_b128 v{a}, v[{r}:{r+3}] offset:{nt*4096}")
    g("s_branch L_join")

    g.lab("L_loader")
    g(f"s_sub_u32 s{sT3}, s{sWV}, 4")
    g("v_lshrrev_b32 v3, 3, v2")
    g(f"s_lshl_b32 s{sT0}, s{sT3}, 5")
    g(f"v_add_u32 v3, s{sT0}, v3")
    g("v_lshlrev_b32 v3, 10, v3")
    g("v_lshrrev_b32 v4, 4, v2")
    g("v_bfe_u32 v5, v2, 4, 2")
    g("v_lshlrev_b32 v5, 1, v5")
    g("v_and_b32 v6, 7, v2")
    g("v_xor_b32 v5, v5, v6")
    g("v_lshl_add_u32 v16, v5, 4, v3")
    for j in range(1, 4):
        g(f"v_add_u32 v{16+j}, {j*(8192-1024)}, v16")
    g(f"s_lshl_b32 s{sT0}, s{sT3}, 4")
    g(f"v_add_u32 v3, s{sT0}, v4")
    g("v_lshlrev_b32 v3, 9, v3")
    g("v_lshlrev_b32 v5, 1, v4")
    g("v_and_b32 v6, 15, v2")
    g("v_xor_b32 v5, v5, v6")
    g("v_lshl_add_u32 v3, v5, 4, v3")
    g(f"s_lshl_b32 s{sT0}, s{sQ}, 8")
    g(f"v_add_u32 v20, s{sT0}, v3")
    g("v_add_u32 v21, 1024, v20")
    g("v_xor_b32 v22, 128, v20")
    g("v_add_u32 v23, 3072, v22")
    g("v_add_u32 v22, 2048, v22")
    g(f"s_lshl_b32 s{sLB}, s{sT3}, 12")
    g(f"s_mul_i32 s{sT0}, s{sR}, 12288")
    g(f"s_mul_i32 s{sT1}, s{sT3}, 3072")
    g(f"s_add_u32 s{sT2}, s{sT0}, s{sT1}")
    g("v_lshlrev_b32 v3, 4, v2")
    g(f"s_lshr_b32 s{sT0}, s{sR}, 1")
    if not opts.get("rot", True):
        g(f"s_mov_b32 s{sT0}, 0")
    for i in range(4):
        g(f"s_add_u32 s{sT1}, s{sT0}, {i}")
        g(f"s_and_b32 s{sT1}, s{sT1}, 3")
        g(f"s_lshl_b32 s{sWC+i}, s{sT1}, 15")
        g(f"s_lshl_b32 s{sT1}, s{sT1}, 7")
        g(f"s_add_u32 s{sXC+i}, s{sXB}, s{sT1}")
    g("s_waitcnt lgkmcnt(0)")
    srd(SX, 4, 5, 16384000)
    srd(SW, 6, 7, 393216)
    wpf = opts.get("wpf", True)
    if wpf:
        for u in range(3):
            g(f"buffer_load_dwordx4 v[{32+4*u}:{35+4*u}], v3, s[{SW}:{SW+3}], s{sT2} offen offset:{u*1024}")
    g(f"s_lshr_b32 s{sT0}, s{sR}, 2")
    g(f"s_and_b32 s{sT0}, s{sT0}, 2")
    g(f"s_or_b32 s{sT0}, s{sT0}, s{sQ}")
    for role in range(1, 4):
        g(f"s_cmp_eq_u32 s{sT0}, {role}")
        g(f"s_cbranch_scc1 L_role{role}")

    def issue(q, c, kind):
        if opts.get("noload"):
            return
        if kind in "CH":
            pl = q if kind == "C" else 1 - q
            p = pol(xcpol if kind == "C" else xhpol)
            g(f"s_add_u32 m0, s{sLB}, {(c&1)*32768 + pl*16384}")
            g(f"s_add_u32 s{sT0}, s{sXC+c}, {pl*512}")
            for j in range(4):
                g(f"buffer_load_dwordx4 v{16+j}, s[{SX}:{SX+3}], s{sT0} offen offset:{j*1024}{p} lds")
        else:
            pos = int(kind)
            tap = TAPS[q][pos]
            g(f"s_add_u32 m0, s{sLB}, {65536 + (c&1)*49152 + pos*16384}")
            g(f"s_add_u32 s{sT0}, s{sWC+c}, {tap*131072}")
            for j in range(4):
                g(f"buffer_load_dwordx4 v{20+j}, s[{SW}:{SW+3}], s{sT0} offen offset:{j*1024} lds")

    for role in range(4):
        q = role & 1
        if role:
            g.lab(f"L_role{role}")
        per = streams[role].split(".")
        if len(per) == 1:
            per = per * 4
        blocks = [(c, k) for c in range(4) for k in per[c]]
        assert sorted(blocks) == sorted((c, k) for c in range(4) for k in "CH012")
        idx = {b: i for i, b in enumerate(blocks)}
        need = [max(idx[(s // 3, XNEED[q][s % 3])], idx[(s // 3, str(s % 3))]) for s in range(12)]

        def last_use(c, k):
            if k in "CH":
                return 3 * c + max(p for p in range(3) if XNEED[q][p] == k)
            return 3 * c + int(k)
        issued = 0
        first = True
        extra = 0
        for s in range(12):
            target = min(max(need[:s + 1]) + R, 19)
            while issued <= target:
                c, k = blocks[issued]
                if c >= 2 and last_use(c - 2, k) > s - 2:
                    break
                issue(q, c, k)
                issued += 1
            if first:
                common_srds()
                stamp(0)
                if stamps:
                    extra += 1
                first = False
            assert issued > need[s], (role, s, issued, need)
            if issued == 20 and extra < 100:
                g(f"s_lshl_b32 s{sT0}, s{sGRP}, 6")
                g(f"v_mov_b32 v24, s{sT0}")
                g(f"buffer_load_dword v5, v24, s[{SD}:{SD+3}], 0 offen sc1")
                extra = 100
                flag_after = 19
            n_after = 4 * (issued - 1 - need[s])
            if extra >= 100:
                n_after += 1
            elif extra and s == 0:
                n_after += 1
            if opts.get("noload"):
                n_after = 63
            g(f"s_waitcnt vmcnt({min(n_after, 63)})")
            if s == 11:
                stamp(1)
            g("s_barrier")
        if role < 3:
            g("s_branch L_ljoin")
    g.lab("L_ljoin")
    g("s_barrier")
    g.c("wait until every workgroup of the group has armed its slot")
    g(f"s_mov_b32 s{sSPIN}, 0")
    g.lab("L_flagpoll")
    g("s_waitcnt vmcnt(0)")
    g("v_cmp_eq_u32 vcc, 0, v5")
    g(f"s_add_u32 s{sSPIN}, s{sSPIN}, 1")
    g(f"s_cmp_ge_u32 s{sSPIN}, {SPINMAX}")
    g("s_cbranch_scc1 L_noflagwait")
    g("s_cbranch_vccz L_noflagwait")
    g("s_sleep 16")
    g(f"buffer_load_dword v5, v24, s[{SD}:{SD+3}], 0 offen sc1")
    g("s_branch L_flagpoll")
    g.lab("L_noflagwait")
    stamp(2)
    g("s_barrier")

    g.lab("L_join")
    GV = 96
    g("v_and_b32 v4, 7, v2")
    g("v_lshrrev_b32 v3, 3, v2")
    g(f"s_lshl_b32 s{sT0}, s{sWV}, 7")
    g(f"v_lshl_add_u32 v7, v4, 4, s{sT0}")
    g("v_lshl_add_u32 v12, v3, 10, v7")
    g("v_lshrrev_b32 v5, 2, v7")
    g(f"s_lshl_b32 s{sT0}, s{sQ}, 8")
    g(f"buffer_load_dword v30, v5, s[{SGA}:{SGA+3}], s{sT0} offen")
    g(f"buffer_load_dword v31, v5, s[{SBE}:{SBE+3}], s{sT0} offen")
    g("v_add_u32 v11, 0x14000, v7")
    g("s_waitcnt lgkmcnt(0)")
    g("s_barrier")
    g(f"s_mov_b32 s{sSPIN}, 0")
    for k in range(8):
        g(f"s_mov_b32 s{sT1}, {k*8192}")
        g(f"buffer_load_dwordx4 v[{GV+4*k}:{GV+4*k+3}], v12, s[{SG}:{SG+3}], s{sT1} offen sc1")
    g(f"s_and_b32 s{sT0}, s{sWV}, 3")
    g(f"s_lshr_b32 s{sT1}, s{sWV}, 2")
    g(f"s_lshl_b32 s{sT2}, s{sT1}, 3")
    g(f"v_add_u32 v3, s{sT2}, v3")
    g("v_and_b32 v5, 3, v2")
    g("v_lshlrev_b32 v5, 2, v5")
    g("v_xor_b32 v5, v5, v3")
    g("v_lshlrev_b32 v5, 4, v5")
    g("v_lshl_add_u32 v5, v4, 11, v5")
    g(f"s_lshl_b32 s{sT2}, s{sT0}, 14")
    g(f"v_add_u32 v5, s{sT2}, v5")
    D = 64
    for e in range(8):
        if e:
            g(f"v_xor_b32 v6, {e*16}, v5")
            a = 6
        else:
            a = 5
        g(f"ds_read_b128 v[{D+4*e}:{D+4*e+3}], v{a} offset:{e*256}")
    g(f"s_lshr_b32 s{sT2}, s{sT0}, 1")
    g(f"s_lshl_b32 s{sT2}, s{sT2}, 6")
    g(f"v_lshl_add_u32 v6, v3, 2, s{sT2}")
    g(f"s_and_b32 s{sT2}, s{sT0}, 1")
    g(f"s_lshl_b32 s{sT3}, s{sT2}, 7")
    g(f"v_lshl_add_u32 v7, v4, 4, s{sT3}")
    g("v_mov_b32 v9, 0x40000000")
    for rho in range(4):
        g(f"v_add_u32 v8, {rho}, v6")
        g(f"v_cmp_gt_u32 vcc, s{sLIM}, v8")
        g(f"v_lshl_add_u32 v{13+rho}, v8, 9, v7")
        g("s_nop 0")
        g(f"v_cndmask_b32 v{13+rho}, v9, v{13+rho}, vcc")
    g(f"s_lshl_b32 s{sT3}, s{sT2}, 9")
    g(f"s_add_u32 s{sT3}, s{sT3}, 0x14000")
    g(f"v_lshl_add_u32 v17, v4, 6, s{sT3}")
    c0 = -2.0 * 1.4426950408889634 * 0.7978845608028654
    c1 = c0 * 0.044715
    g(f"v_mov_b32 v28, {f32bits(c1):#x}")
    g(f"v_mov_b32 v29, {f32bits(c0):#x}")
    g.lab("L_gpoll")
    g(f"s_mov_b32 s{sMASK}, 0")
    g("s_waitcnt vmcnt(0)")
    for k in range(8):
        b = GV + 4 * k
        g(f"v_max3_u32 v3, v{b}, v{b+1}, v{b+2}")
        g(f"v_max_u32 v3, v3, v{b+3}")
        g("v_cmp_eq_u32 vcc, -1, v3")
        g("s_cmp_lg_u64 vcc, 0")
        g(f"s_cselect_b32 s{sT0}, {1<<k}, 0")
        g(f"s_or_b32 s{sMASK}, s{sMASK}, s{sT0}")
    g("s_cbranch_scc0 L_gdone")
    g(f"s_add_u32 s{sSPIN}, s{sSPIN}, 1")
    g(f"s_cmp_ge_u32 s{sSPIN}, {SPINMAX}")
    g("s_cbranch_scc1 L_gdone")
    if int(opts.get("gsleep", 0)):
        g(f"s_sleep {int(opts.get('gsleep', 0))}")
    for k in range(8):
        g(f"s_bitcmp1_b32 s{sMASK}, {k}")
        g(f"s_cbranch_scc0 L_gskip{k}")
        g(f"s_mov_b32 s{sT1}, {k*8192}")
        g(f"buffer_load_dwordx4 v[{GV+4*k}:{GV+4*k+3}], v12, s[{SG}:{SG+3}], s{sT1} offen sc1")
        g.lab(f"L_gskip{k}")
    g("s_branch L_gpoll")
    g.lab("L_gdone")
    stamp(4)
    for step in (16, 8, 4):
        for a in range(GV, GV + step, 2):
            g(f"v_pk_add_f32 v[{a}:{a+1}], v[{a}:{a+1}], v[{a+step}:{a+step+1}]")
    g(f"s_mov_b32 s{sT0}, {f32bits(1.0/7999.0):#x}")
    g(f"s_mov_b32 s{sT1}, {f32bits(1e-5):#x}")
    for i in range(4):
        g(f"v_add_f32_dpp v{GV+4+i}, v{GV+i}, v{GV+i} row_ror:8 row_mask:0xf bank_mask:0xf")
    g("v_lshlrev_b32 v18, 16, v30")
    g("v_and_b32 v19, 0xffff0000, v30")
    for i in range(4):
        g(f"v_mov_b32 v{GV+i}, v{GV+4+i}")
    g("v_lshlrev_b32 v20, 16, v31")
    g("v_and_b32 v21, 0xffff0000, v31")
    for i in range(4):
        g(f"v_permlane16_swap_b32 v{GV+i}, v{GV+4+i}")
    g("s_nop 0")
    for a in (0, 2):
        g(f"v_pk_add_f32 v[{GV+a}:{GV+a+1}], v[{GV+a}:{GV+a+1}], v[{GV+4+a}:{GV+5+a}]")
    for i in range(4):
        g(f"v_mov_b32 v{GV+4+i}, v{GV+i}")
    g("s_nop 1")
    for i in range(4):
        g(f"v_permlane32_swap_b32 v{GV+i}, v{GV+4+i}")
    g("s_nop 0")
    for a in (0, 2):
        g(f"v_pk_add_f32 v[{GV+a}:{GV+a+1}], v[{GV+a}:{GV+a+1}], v[{GV+4+a}:{GV+5+a}]")
    for cidx in range(2):
        S, Q = GV + 2 * cidx, GV + 2 * cidx + 1
        g(f"v_mul_f32 v{S}, s{sT0}, v{S}")
        g(f"v_mul_f32 v{Q}, s{sT0}, v{Q}")
        g(f"v_fma_f32 v{Q}, -v{S}, v{S}, v{Q}")
        g(f"v_max_f32 v{Q}, 0, v{Q}")
        g(f"v_add_f32 v{Q}, s{sT1}, v{Q}")
        g(f"v_rsq_f32 v{Q}, v{Q}")
        g("s_nop 0")
        g(f"v_mul_f32 v{22+2*cidx}, v{18+cidx}, v{Q}")
        g(f"v_fma_f32 v{23+2*cidx}, -v{S}, v{22+2*cidx}, v{20+cidx}")
    g("s_mov_b64 exec, 0xff")
    g("ds_write_b128 v11, v[22:25]")
    g("s_mov_b64 exec, -1")
    P = 32
    g("s_waitcnt lgkmcnt(0)")
    g("s_barrier")
    for k in range(4):
        g(f"ds_read_b128 v[{P+4*k}:{P+4*k+3}], v17 offset:{k*16}")
    g("s_waitcnt lgkmcnt(0)")
    stamp(5)
    BC = "op_sel:[0,0,1] op_sel_hi:[1,0,1]"
    U = 96
    for rp in range(2):
        for e in range(8):
            d = D + 4 * e + 2 * rp
            g(f"v_pk_fma_f32 v[{d}:{d+1}], v[{d}:{d+1}], v[{P+2*e}:{P+2*e+1}], v[{P+2*e}:{P+2*e+1}] {BC}")
        for e in range(8):
            d = D + 4 * e + 2 * rp
            u = U + 2 * e
            g(f"v_pk_mul_f32 v[{u}:{u+1}], v[{d}:{d+1}], v[{d}:{d+1}]")
        for e in range(8):
            u = U + 2 * e
            g(f"v_pk_fma_f32 v[{u}:{u+1}], v[{u}:{u+1}], v[28:29], v[28:29] {BC}")
        for e in range(8):
            d = D + 4 * e + 2 * rp
            u = U + 2 * e
            g(f"v_pk_mul_f32 v[{u}:{u+1}], v[{u}:{u+1}], v[{d}:{d+1}]")
        for e in range(16):
            g(f"v_exp_f32 v{U+e}, v{U+e}")
        for e in range(8):
            u = U + 2 * e
            g(f"v_pk_add_f32 v[{u}:{u+1}], v[{u}:{u+1}], 1.0 op_sel_hi:[1,0]")
        for e in range(16):
            g(f"v_rcp_f32 v{U+e}, v{U+e}")
        for e in range(8):
            d = D + 4 * e + 2 * rp
            u = U + 2 * e
            g(f"v_pk_mul_f32 v[{d}:{d+1}], v[{u}:{u+1}], v[{d}:{d+1}]")
        for r2 in range(2):
            rho = 2 * rp + r2
            O = 112 + 4 * rho
            for k in range(4):
                g(f"v_cvt_pk_bf16_f32 v{O+k}, v{D+4*(2*k)+rho}, v{D+4*(2*k+1)+rho}")
            g(f"buffer_store_dwordx4 v[{O}:{O+3}], v{13+rho}, s[{SO}:{SO+3}], s{sOB} offen{pol(opol)}")
    if stamps:
        g("s_waitcnt vmcnt(0)")
        stamp(6)
    g.lab("L_end")
    g("s_endpgm")
    g.c("---- the four workgroups without a tile arm the slots of one group each")
    g.lab("L_armer")
    g(f"s_sub_u32 s{sGRP}, s{sXCD}, 6")
    g(f"s_lshl_b32 s{sGRP}, s{sGRP}, 1")
    g(f"s_add_u32 s{sGRP}, s{sGRP}, s{sQ}")
    g("v_lshlrev_b32 v3, 4, v0")
    for i in range(4, 8):
        g(f"v_mov_b32 v{i}, -1")
    g("s_waitcnt lgkmcnt(0)")
    srd(SD, 14, 15, 256)
    g(f"s_lshl_b32 s{sT0}, s{sGRP}, 16")
    g(f"s_add_u32 s{SG}, s16, s{sT0}")
    g(f"s_addc_u32 s{SG+1}, s17, 0")
    g(f"s_and_b32 s{SG+1}, s{SG+1}, 0xffff")
    g(f"s_mov_b32 s{SG+2}, {63*1024}")
    g(f"s_mov_b32 s{SG+3}, 0x00020000")
    for k in range(8):
        g(f"s_mov_b32 s{sT1}, {k*8192}")
        g(f"buffer_store_dwordx4 v[4:7], v3, s[{SG}:{SG+3}], s{sT1} offen sc1")
    g("s_waitcnt vmcnt(0)")
    g("s_barrier")
    g("v_cmp_eq_u32 vcc, 0, v0")
    g(f"s_lshl_b32 s{sT0}, s{sGRP}, 6")
    g(f"v_mov_b32 v8, s{sT0}")
    g("v_mov_b32 v9, 1")
    g("s_and_saveexec_b64 s[4:5], vcc")
    g("s_cbranch_execz L_armend")
    g(f"buffer_store_dword v9, v8, s[{SD}:{SD+3}], 0 offen sc1")
    g.lab("L_armend")
    g("s_endpgm")

    out = HEADER
    out += "; @launch grid=(256,1,1) block=(512,1,1) lds=163840\n"
    out += '.amdgcn_target "amdgcn-amd-amdhsa--gfx950"\n.text\n'
    out += f".globl {NAME}_kernel\n.p2align 8\n.type {NAME}_kernel,@function\n{NAME}_kernel:\n"
    out += "\n".join(g.L) + "\n"
    nv = 168 if stamps else 160
    out += f""".section .rodata,"a"
.p2align 6
.amdhsa_kernel {NAME}_kernel
  .amdhsa_next_free_vgpr {nv}
  .amdhsa_next_free_sgpr 96
  .amdhsa_accum_offset {nv}
  .amdhsa_group_segment_fixed_size 0
  .amdhsa_kernarg_size 56
  .amdhsa_user_sgpr_count 2
  .amdhsa_user_sgpr_kernarg_segment_ptr 1
  .amdhsa_system_sgpr_workgroup_id_x 1
  .amdhsa_float_denorm_mode_32 3
.end_amdhsa_kernel
"""
    return out


if __name__ == "__main__":
    opts = {}
    outp = f"cdna_kernels/{NAME}.s"
    for a in sys.argv[1:]:
        if a.startswith("-o="):
            outp = a[3:]
        else:
            k, _, v = a.partition("=")
            if v in ("0", "1") and k not in ("R", "gsleep", "bpos", "pace", "pacemod"):
                v = bool(int(v))
            opts[k] = v
    open(outp, "w").write(build(opts))
    print("wrote", outp)
```

```python
import sys
import struct

NAME = "standalone__self_sup_conv_stem_wavlm__speech"

HEADER = """; Kernarg layout for this problem (56 bytes, ptrs only, base s[0:1]):
;   offset  48: d_ws      268435456 bytes workspace
"""


def f32bits(x):
    return struct.unpack("<I", struct.pack("<f", x))[0]


class Gen:
    def __init__(self, opts):
        self.o = opts
        self.L = []

    def __call__(self, s):
        self.L.append("    " + s)

    def lab(self, s):
        self.L.append(s + ":")

    def c(self, s):
        self.L.append("    ; " + s)


TAPS = {0: [0, 2, 1], 1: [1, 0, 2]}
XNEED = {0: ["C", "C", "H"], 1: ["C", "H", "H"]}


def build(opts):
    g = Gen(opts)
    xcpol = opts.get("xcpol", "")
    xhpol = opts.get("xhpol", "")
    opol = opts.get("opol", "nt")
    stamps = opts.get("stamps", False)
    R = int(opts.get("R", 3))
    SPINMAX = "0x8000"
    streams = opts.get("streams", "C01H2,C0H12").split(",")
    pol = lambda p: (" " + p.replace("+", " ")) if p else ""

    SX, SW, SO, SG, SD, SGA, SBE = 20, 24, 28, 32, 36, 40, 44
    sXCD, sR, sQ, sPI, sB, sT, sWV = 50, 51, 52, 53, 54, 55, 56
    sXB, sOB, sLIM, sGRP = 57, 58, 59, 60
    sI, sT0, sT1, sT2, sT3 = 61, 62, 63, 64, 65
    sFI = 66
    sLB = 67
    sMASK, sNEW = 68, 69
    sSPIN = 72
    sXC, sWC = 86, 90
    SST = 76
    sTS = 80
    VS = 160

    def srd(base, lo, hi, nbytes):
        g(f"s_mov_b32 s{base}, s{lo}")
        g(f"s_and_b32 s{base+1}, s{hi}, 0xffff")
        g(f"s_mov_b32 s{base+2}, {nbytes}")
        g(f"s_mov_b32 s{base+3}, 0x00020000")

    def stamp(slot):
        if not stamps:
            return
        g(f"s_memrealtime s[{sTS}:{sTS+1}]")
        if slot in (1, 2):
            g(f"s_memtime s[{sTS+2}:{sTS+3}]")
        g("s_waitcnt lgkmcnt(0)")
        g(f"v_mov_b32 v{VS}, s{sTS}")
        g(f"buffer_store_dword v{VS}, v{VS+1}, s[{SST}:{SST+3}], 0 offen offset:{slot*4}")
        if slot in (1, 2):
            g(f"v_mov_b32 v{VS}, s{sTS+2}")
            g(f"buffer_store_dword v{VS}, v{VS+1}, s[{SST}:{SST+3}], 0 offen offset:{(slot+7)*4}")

    if stamps:
        g(f"s_memrealtime s[{sTS+4}:{sTS+5}]")
    g("s_cmp_ge_u32 s2, 256")
    g("s_cbranch_scc1 L_end")
    g("s_load_dwordx8 s[4:11], s[0:1], 0")
    g("s_load_dwordx4 s[12:15], s[0:1], 32")
    g("s_load_dwordx2 s[16:17], s[0:1], 48")
    g(f"s_and_b32 s{sXCD}, s2, 7")
    g(f"s_lshr_b32 s{sR}, s2, 3")
    g(f"s_and_b32 s{sQ}, s{sR}, 1")
    g(f"s_lshr_b32 s{sPI}, s{sR}, 1")
    g(f"s_lshl_b32 s{sPI}, s{sPI}, 3")
    g(f"s_add_u32 s{sPI}, s{sPI}, s{sXCD}")
    g(f"s_cmp_ge_u32 s{sPI}, 126")
    g("s_cbranch_scc1 L_armer")
    g(f"s_cmp_ge_u32 s{sPI}, 63")
    g(f"s_cselect_b32 s{sB}, 1, 0")
    g(f"s_mul_i32 s{sT}, s{sB}, 63")
    g(f"s_sub_u32 s{sT}, s{sPI}, s{sT}")
    g("v_lshrrev_b32 v1, 6, v0")
    g("v_and_b32 v2, 63, v0")
    g(f"v_readfirstlane_b32 s{sWV}, v1")
    g(f"s_mul_i32 s{sXB}, s{sB}, 16000")
    g(f"s_mul_i32 s{sT0}, s{sT}, 254")
    g(f"s_add_u32 s{sXB}, s{sXB}, s{sT0}")
    g(f"s_lshl_b32 s{sXB}, s{sXB}, 9")
    g(f"s_mul_i32 s{sOB}, s{sB}, 7999")
    g(f"s_mul_i32 s{sT0}, s{sT}, 127")
    g(f"s_add_u32 s{sOB}, s{sOB}, s{sT0}")
    g(f"s_lshl_b32 s{sOB}, s{sOB}, 9")
    g(f"s_lshl_b32 s{sT1}, s{sQ}, 8")
    g(f"s_add_u32 s{sOB}, s{sOB}, s{sT1}")
    g(f"s_sub_u32 s{sLIM}, 7999, s{sT0}")
    g(f"s_min_u32 s{sLIM}, s{sLIM}, 127")
    g(f"s_lshl_b32 s{sGRP}, s{sB}, 1")
    g(f"s_add_u32 s{sGRP}, s{sGRP}, s{sQ}")
    g(f"s_cmp_lt_u32 s{sWV}, 4")
    g("s_cbranch_scc1 L_compute")
    g.L.append("@@SEC compute")
    g.lab("L_compute")

    def common_srds():
        srd(SGA, 8, 9, 512)
        srd(SBE, 10, 11, 512)
        srd(SO, 12, 13, 8190976)
        srd(SD, 14, 15, 256)
        g(f"s_lshl_b32 s{sT0}, s{sGRP}, 16")
        g(f"s_add_u32 s{SG}, s16, s{sT0}")
        g(f"s_addc_u32 s{SG+1}, s17, 0")
        g(f"s_and_b32 s{SG+1}, s{SG+1}, 0xffff")
        g(f"s_mov_b32 s{SG+2}, {63*1024}")
        g(f"s_mov_b32 s{SG+3}, 0x00020000")
        if stamps:
            g(f"s_add_u32 s{SST}, s16, 0x100000")
            g(f"s_addc_u32 s{SST+1}, s17, 0")
            g(f"s_and_b32 s{SST+1}, s{SST+1}, 0xffff")
            g(f"s_mov_b32 s{SST+2}, 0x10000")
            g(f"s_mov_b32 s{SST+3}, 0x00020000")
            g(f"s_lshl_b32 s{sT0}, s2, 8")
            g(f"s_lshr_b32 s{sT1}, s{sWV}, 2")
            g(f"s_lshl_b32 s{sT1}, s{sT1}, 7")
            g(f"s_add_u32 s{sT0}, s{sT0}, s{sT1}")
            g(f"v_mov_b32 v{VS+1}, s{sT0}")
            g(f"v_and_b32 v{VS}, 0xff, v0")
            g(f"v_cmp_ne_u32 vcc, 0, v{VS}")
            g(f"v_mov_b32 v{VS}, 0x40000000")
            g("s_nop 1")
            g(f"v_cndmask_b32 v{VS+1}, v{VS+1}, v{VS}, vcc")

    vAa = [[12 + p * 2 + ks for ks in range(2)] for p in range(3)]
    vBa = [20, 21, 22, 23]
    FA = [32, 128]
    FB = [48, 144]
    ACC = 64

    def T(mt, nt):
        return ACC + (mt * 4 + nt) * 4

    g.c("---- compute wave setup")
    if opts.get("prio", False):
        g("s_setprio 3")
    if opts.get("cpf", False):
        g.c("pull the kernel's own code into L2 (64 B per lane)")
        g("s_getpc_b64 s[94:95]")
        g.lab("L_pc")
        g(f"s_sub_u32 s94, s94, L_pc-{NAME}_kernel")
        g("s_subb_u32 s95, s95, 0")
        g("v_lshlrev_b32 v30, 6, v0")
        g(f"v_min_u32 v30, L_codeend-{NAME}_kernel-4, v30")
        g("global_load_dword v31, v30, s[94:95]")
    g(f"s_lshr_b32 s{sT0}, s{sWV}, 1")
    g(f"s_and_b32 s{sT1}, s{sWV}, 1")
    g(f"s_lshl_b32 s{sT2}, s{sT0}, 6")
    g("v_and_b32 v3, 15, v2")
    g("v_lshrrev_b32 v8, 4, v2")
    g(f"v_add_u32 v9, s{sT2}, v3")
    for v in range(2):
        if v == 1:
            g("v_add_u32 v9, 1, v9")
        g("v_and_b32 v10, 6, v9")
        g("v_xor_b32 v10, v10, v8")
        g("v_lshlrev_b32 v10, 4, v10")
        g(f"v_lshl_add_u32 v{4+v}, v9, 7, v10")
    g("v_add_u32 v6, 0x4000, v4")
    g(f"s_cmp_eq_u32 s{sQ}, 0")
    g("s_cselect_b64 vcc, -1, 0")
    g(f"v_cndmask_b32 v{vAa[0][0]}, v6, v4, vcc")
    g(f"v_cndmask_b32 v{vAa[1][0]}, v4, v5, vcc")
    g(f"v_cndmask_b32 v{vAa[2][0]}, v5, v6, vcc")
    for p in range(3):
        g(f"v_xor_b32 v{vAa[p][1]}, 64, v{vAa[p][0]}")
    g("v_bfe_u32 v9, v2, 2, 2")
    g("v_lshl_add_u32 v10, v8, 3, v9")
    g("v_lshlrev_b32 v10, 8, v10")
    g("v_and_b32 v11, 3, v2")
    g("v_lshl_add_u32 v10, v11, 3, v10")
    g("v_and_b32 v11, 1, v8")
    g("v_lshl_or_b32 v11, v11, 2, v9")
    g(f"s_lshl_b32 s{sT2}, s{sT1}, 2")
    g(f"v_xor_b32 v11, s{sT2}, v11")
    g("v_lshl_add_u32 v10, v11, 5, v10")
    g(f"v_add_u32 v{vBa[0]}, 0x10000, v10")
    for nt in range(1, 4):
        g(f"v_xor_b32 v{vBa[nt]}, {nt*32}, v{vBa[0]}")
    for i in range(64):
        g(f"v_mov_b32 v{ACC+i}, 0")
    g("s_waitcnt lgkmcnt(0)")
    common_srds()
    if stamps:
        g(f"v_mov_b32 v{VS}, s{sTS+4}")
        g(f"buffer_store_dword v{VS}, v{VS+1}, s[{SST}:{SST+3}], 0 offen")

    RORD = ["A0", "B0a", "B0b", "B1a", "B1b", "A1", "B2a", "B2b", "B3a", "B3b", "A2", "A3"]
    MORD = [(0, 0), (0, 1), (1, 0), (1, 1), (0, 2), (0, 3), (1, 2), (1, 3),
            (2, 0), (2, 1), (2, 2), (2, 3), (3, 0), (3, 1), (3, 2), (3, 3)]

    def rd(n, which):
        if opts.get("noread"):
            return
        st = n & 1
        pos, ks = divmod(n % 6, 2)
        if which[0] == "A":
            mt = int(which[1])
            r = FA[st] + 4 * mt
            g(f"ds_read_b128 v[{r}:{r+3}], v{vAa[pos][ks]} offset:{mt*2048}")
        else:
            nt, j = int(which[1]), "ab".index(which[2])
            r = FB[st] + 4 * nt + 2 * j
            g(f"ds_read_b64_tr_b16 v[{r}:{r+1}], v{vBa[nt]} offset:{pos*16384+ks*8192+j*1024}")

    def mf(n, mt, nt):
        if opts.get("nomfma"):
            return
        st = n & 1
        t = T(mt, nt)
        fa, fb = FA[st] + 4 * mt, FB[st] + 4 * nt
        g(f"v_mfma_f32_16x16x32_bf16 v[{t}:{t+3}], v[{fa}:{fa+3}], v[{fb}:{fb+3}], v[{t}:{t+3}]")
        pace = int(opts.get("pace", -1))
        if pace >= 0 and (mt * 4 + nt) % int(opts.get("pacemod", 1)) == 0:
            g(f"s_nop {pace}")

    def tog(regs, val):
        for r in regs:
            g(f"v_xor_b32 v{r}, {val:#x}, v{r}")

    BPOS = int(opts.get("bpos", 4))
    g(f"s_mov_b32 s{sI}, 0")
    g("s_barrier")
    stamp(1)
    for wh in RORD:
        rd(0, wh)
    g.lab("L_loop")
    queue = [(0, wh) for wh in RORD]
    for n in range(6):
        last = (n & 1) == 1
        pending = list(RORD)
        first_rd = BPOS if last else 0
        for i, (mt, nt) in enumerate(MORD):
            needs = {(n, f"A{mt}"), (n, f"B{nt}a"), (n, f"B{nt}b")}
            p_ = max((k for k, t in enumerate(queue) if t in needs), default=-1)
            if p_ >= 0:
                g(f"s_waitcnt lgkmcnt({len(queue) - 1 - p_})")
                del queue[:p_ + 1]
            mf(n, mt, nt)
            if last and i == BPOS - 1:
                if n == 5:
                    tog(vBa, 0xc000)
                g("s_waitcnt lgkmcnt(0)")
                del queue[:]
                g("s_barrier")
            if i >= first_rd - (1 if last else 0) and pending and not (last and i < BPOS - 1):
                k = 1
                rem = 16 - i
                k = -(-len(pending) // rem)
                for _ in range(k):
                    wh = pending.pop(0)
                    rd(n + 1, wh)
                    queue.append(((n + 1) % 6, wh))
            if i == 13 and n in (2, 4, 5):
                tog(vAa[{2: 0, 4: 1, 5: 2}[n]], 0x8000)
        assert not pending
    assert queue == [(0, wh) for wh in RORD][-len(queue):]
    g(f"s_add_u32 s{sI}, s{sI}, 1")
    g(f"s_cmp_lt_u32 s{sI}, 4")
    g("s_cbranch_scc1 L_loop")
    stamp(2)

    g.c("---- statistics")
    g.lab("L_tail")
    g(f"s_lshr_b32 s{sT0}, s{sWV}, 1")
    g(f"s_and_b32 s{sT1}, s{sWV}, 1")
    g(f"s_lshl_b32 s{sT2}, s{sT0}, 6")
    g(f"s_add_u32 s{sT2}, s{sT2}, 48")
    g(f"v_lshl_add_u32 v9, v8, 2, s{sT2}")
    g(f"s_lshl_b32 s{sT2}, s{sT1}, 9")
    g(f"v_lshl_add_u32 v10, v2, 3, s{sT2}")
    g("v_add_u32 v11, 0x10000, v10")
    g("s_waitcnt lgkmcnt(0)")
    for mt in range(4):
        if mt == 3:
            for i in range(1, 4):
                g(f"v_add_u32 v26, {i}, v9")
                g(f"v_cmp_gt_u32 vcc, s{sLIM}, v26")
                g("s_nop 1")
                for nt in range(4):
                    r = T(3, nt) + i
                    g(f"v_cndmask_b32 v{r}, 0, v{r}, vcc")
        for h2 in range(2):
            for nt in range(4):
                sa, qa = 32 + 4 * nt, 34 + 4 * nt
                p = T(mt, nt) + 2 * h2
                if mt == 0 and h2 == 0:
                    g(f"v_pk_mul_f32 v[{qa}:{qa+1}], v[{p}:{p+1}], v[{p}:{p+1}]")
                    continue
                if mt == 0 and h2 == 1:
                    g(f"v_pk_add_f32 v[{sa}:{sa+1}], v[{p-2}:{p-1}], v[{p}:{p+1}]")
                else:
                    g(f"v_pk_add_f32 v[{sa}:{sa+1}], v[{sa}:{sa+1}], v[{p}:{p+1}]")
                g(f"v_pk_fma_f32 v[{qa}:{qa+1}], v[{p}:{p+1}], v[{p}:{p+1}], v[{qa}:{qa+1}]")
    for nt in range(4):
        g(f"v_add_f32 v{48+nt}, v{32+4*nt}, v{33+4*nt}")
        g(f"v_add_f32 v{52+nt}, v{34+4*nt}, v{35+4*nt}")
    g("s_nop 0")
    for bse in (48, 52):
        g(f"v_permlane32_swap_b32 v{bse}, v{bse+2}")
        g(f"v_permlane32_swap_b32 v{bse+1}, v{bse+3}")
    g("s_nop 0")
    for bse in (48, 52):
        g(f"v_add_f32 v{bse}, v{bse}, v{bse+2}")
        g(f"v_add_f32 v{bse+1}, v{bse+1}, v{bse+3}")
    g("s_nop 1")
    for bse in (48, 52):
        g(f"v_permlane16_swap_b32 v{bse}, v{bse+1}")
    g("s_nop 0")
    g("v_add_f32 v53, v52, v53")
    g("v_add_f32 v52, v48, v49")
    g(f"s_cmp_eq_u32 s{sT0}, 0")
    g("s_cbranch_scc1 L_wm0a")
    g("ds_write_b64 v11, v[52:53]")
    g("s_waitcnt lgkmcnt(0)")
    g.lab("L_wm0a")
    g("s_barrier")
    g(f"s_cmp_lg_u32 s{sT0}, 0")
    g("s_cbranch_scc1 L_wm1b")
    g("ds_read_b64 v[54:55], v11")
    g(f"s_lshl_b32 s{sT2}, s{sT}, 10")
    g("v_mov_b32 v56, 0x7fc00000")
    g("s_waitcnt lgkmcnt(0)")
    g("v_pk_add_f32 v[52:53], v[52:53], v[54:55]")
    g("v_cmp_eq_u32 vcc, -1, v52")
    g("s_nop 1")
    g("v_cndmask_b32 v52, v52, v56, vcc")
    g("v_cmp_eq_u32 vcc, -1, v53")
    g("s_nop 1")
    g("v_cndmask_b32 v53, v53, v56, vcc")
    g(f"buffer_store_dwordx2 v[52:53], v10, s[{SG}:{SG+3}], s{sT2} offen sc1")
    g.lab("L_wm1b")
    stamp(3)
    g.c("---- transpose the accumulators through LDS (fp32, column-major, swizzled)")
    g("v_and_b32 v9, 7, v3")
    g("v_lshrrev_b32 v10, 3, v3")
    g("v_lshlrev_b32 v10, 2, v10")
    g("v_xor_b32 v9, v9, v10")
    g("v_xor_b32 v9, v9, v8")
    g("v_lshlrev_b32 v9, 4, v9")
    g("v_lshl_add_u32 v9, v3, 8, v9")
    g(f"s_lshl_b32 s{sT2}, s{sWV}, 14")
    g(f"v_add_u32 v9, s{sT2}, v9")
    for mt in range(4):
        for par in range(2):
            x = ((4 * mt) ^ (8 * par)) * 16
            if x:
                g(f"v_xor_b32 v10, {x}, v9")
                a = 10
            else:
                a = 9
            for nt in (par, par + 2):
                r = T(mt, nt)
                g(f"ds_write_b128 v{a}, v[{r}:{r+3}] offset:{nt*4096}")
    g.L.append("@@SEC loader")

    g(f"s_sub_u32 s{sT3}, s{sWV}, 4")
    g("v_lshrrev_b32 v3, 3, v2")
    g(f"s_lshl_b32 s{sT0}, s{sT3}, 5")
    g(f"v_add_u32 v3, s{sT0}, v3")
    g("v_lshlrev_b32 v3, 10, v3")
    g("v_lshrrev_b32 v4, 4, v2")
    g("v_bfe_u32 v5, v2, 4, 2")
    g("v_lshlrev_b32 v5, 1, v5")
    g("v_and_b32 v6, 7, v2")
    g("v_xor_b32 v5, v5, v6")
    g("v_lshl_add_u32 v16, v5, 4, v3")
    for j in range(1, 4):
        g(f"v_add_u32 v{16+j}, {j*(8192-1024)}, v16")
    g(f"s_lshl_b32 s{sT0}, s{sT3}, 4")
    g(f"v_add_u32 v3, s{sT0}, v4")
    g("v_lshlrev_b32 v3, 9, v3")
    g("v_lshlrev_b32 v5, 1, v4")
    g("v_and_b32 v6, 15, v2")
    g("v_xor_b32 v5, v5, v6")
    g("v_lshl_add_u32 v3, v5, 4, v3")
    g(f"s_lshl_b32 s{sT0}, s{sQ}, 8")
    g(f"v_add_u32 v20, s{sT0}, v3")
    g("v_add_u32 v21, 1024, v20")
    g("v_xor_b32 v22, 128, v20")
    g("v_add_u32 v23, 3072, v22")
    g("v_add_u32 v22, 2048, v22")
    g(f"s_lshl_b32 s{sLB}, s{sT3}, 12")
    g(f"s_mul_i32 s{sT0}, s{sR}, 12288")
    g(f"s_mul_i32 s{sT1}, s{sT3}, 3072")
    g(f"s_add_u32 s{sT2}, s{sT0}, s{sT1}")
    g("v_lshlrev_b32 v3, 4, v2")
    g(f"s_lshr_b32 s{sT0}, s{sR}, 1")
    if not opts.get("rot", True):
        g(f"s_mov_b32 s{sT0}, 0")
    for i in range(4):
        g(f"s_add_u32 s{sT1}, s{sT0}, {i}")
        g(f"s_and_b32 s{sT1}, s{sT1}, 3")
        g(f"s_lshl_b32 s{sWC+i}, s{sT1}, 15")
        g(f"s_lshl_b32 s{sT1}, s{sT1}, 7")
        g(f"s_add_u32 s{sXC+i}, s{sXB}, s{sT1}")
    g("s_waitcnt lgkmcnt(0)")
    srd(SX, 4, 5, 16384000)
    srd(SW, 6, 7, 393216)
    wpf = opts.get("wpf", False)
    if wpf:
        for u in range(3):
            g(f"buffer_load_dwordx4 v[{32+4*u}:{35+4*u}], v3, s[{SW}:{SW+3}], s{sT2} offen offset:{u*1024}")
    g(f"s_lshr_b32 s{sT0}, s{sR}, 2")
    g(f"s_and_b32 s{sT0}, s{sT0}, 2")
    g(f"s_or_b32 s{sT0}, s{sT0}, s{sQ}")
    nroles = len(streams)
    if nroles == 2:
        g(f"s_mov_b32 s{sT0}, s{sQ}")
    for role in range(1, nroles):
        g(f"s_cmp_eq_u32 s{sT0}, {role}")
        g(f"s_cbranch_scc1 L_role{role}")

    def issue(q, c, kind):
        if opts.get("noload"):
            return
        if kind in "CH":
            pl = q if kind == "C" else 1 - q
            p = pol(xcpol if kind == "C" else xhpol)
            g(f"s_add_u32 m0, s{sLB}, {(c&1)*32768 + pl*16384}")
            g(f"s_add_u32 s{sT0}, s{sXC+c}, {pl*512}")
            for j in range(4):
                g(f"buffer_load_dwordx4 v{16+j}, s[{SX}:{SX+3}], s{sT0} offen offset:{j*1024}{p} lds")
        else:
            pos = int(kind)
            tap = TAPS[q][pos]
            g(f"s_add_u32 m0, s{sLB}, {65536 + (c&1)*49152 + pos*16384}")
            g(f"s_add_u32 s{sT0}, s{sWC+c}, {tap*131072}")
            for j in range(4):
                g(f"buffer_load_dwordx4 v{20+j}, s[{SW}:{SW+3}], s{sT0} offen offset:{j*1024} lds")

    for role in range(nroles):
        q = role & 1
        if role:
            g.lab(f"L_role{role}")
        per = streams[role].split(".")
        if len(per) == 1:
            per = per * 4
        blocks = [(c, k) for c in range(4) for k in per[c]]
        assert sorted(blocks) == sorted((c, k) for c in range(4) for k in "CH012")
        idx = {b: i for i, b in enumerate(blocks)}
        need = [max(idx[(s // 3, XNEED[q][s % 3])], idx[(s // 3, str(s % 3))]) for s in range(12)]

        def last_use(c, k):
            if k in "CH":
                return 3 * c + max(p for p in range(3) if XNEED[q][p] == k)
            return 3 * c + int(k)
        issued = 0
        first = True
        extra = 0
        for s in range(12):
            target = min(max(need[:s + 1]) + R, 19)
            while issued <= target:
                c, k = blocks[issued]
                if c >= 2 and last_use(c - 2, k) > s - 2:
                    break
                issue(q, c, k)
                issued += 1
            if first:
                common_srds()
                stamp(0)
                if stamps:
                    extra += 1
                first = False
            assert issued > need[s], (role, s, issued, need)
            if issued == 20 and extra < 100:
                g(f"s_lshl_b32 s{sT0}, s{sGRP}, 6")
                g(f"v_mov_b32 v24, s{sT0}")
                g(f"buffer_load_dword v5, v24, s[{SD}:{SD+3}], 0 offen sc1")
                extra = 100
                flag_after = 19
                if opts.get("tpf", False):
                    g.c("pull the code of the tail phases into L2 (64 B per lane)")
                    g("s_getpc_b64 s[94:95]")
                    g.lab(f"L_pc{role}")
                    g(f"s_add_u32 s94, s94, L_tail-L_pc{role}")
                    g("s_addc_u32 s95, s95, 0")
                    g("v_and_b32 v26, 0xff, v0")
                    g("v_lshlrev_b32 v26, 6, v26")
                    g("v_min_u32 v26, L_end-L_tail, v26")
                    g("global_load_dword v27, v26, s[94:95]")
                    extra = 101
            n_after = 4 * (issued - 1 - need[s])
            if extra >= 100:
                n_after += extra - 99
            elif extra and s == 0:
                n_after += 1
            if opts.get("noload"):
                n_after = 63
            g(f"s_waitcnt vmcnt({min(n_after, 63)})")
            if s == 11:
                stamp(1)
            g("s_barrier")
        if role < nroles - 1:
            g("s_branch L_ljoin")
    g.lab("L_ljoin")
    g("s_barrier")
    g.c("wait until every workgroup of the group has armed its slot")
    g(f"s_mov_b32 s{sSPIN}, 0")
    g(f"s_waitcnt vmcnt({1 if (opts.get('tpf', False) and not stamps) else 0})")
    g.lab("L_flagpoll")
    g("v_cmp_eq_u32 vcc, 0, v5")
    g(f"s_add_u32 s{sSPIN}, s{sSPIN}, 1")
    g(f"s_cmp_ge_u32 s{sSPIN}, {SPINMAX}")
    g("s_cbranch_scc1 L_noflagwait")
    g("s_cbranch_vccz L_noflagwait")
    g("s_sleep 16")
    g(f"buffer_load_dword v5, v24, s[{SD}:{SD+3}], 0 offen sc1")
    g("s_waitcnt vmcnt(0)")
    g("s_branch L_flagpoll")
    g.lab("L_noflagwait")
    stamp(2)
    g("s_barrier")

    g("s_branch L_join")
    g.L.append("@@SEC join")
    g.lab("L_join")
    GV = 96
    g("v_and_b32 v4, 7, v2")
    g("v_lshrrev_b32 v3, 3, v2")
    g(f"s_lshl_b32 s{sT0}, s{sWV}, 7")
    g(f"v_lshl_add_u32 v7, v4, 4, s{sT0}")
    g("v_lshl_add_u32 v12, v3, 10, v7")
    g("v_lshrrev_b32 v5, 2, v7")
    g(f"s_lshl_b32 s{sT0}, s{sQ}, 8")
    g(f"buffer_load_dword v30, v5, s[{SGA}:{SGA+3}], s{sT0} offen")
    g(f"buffer_load_dword v31, v5, s[{SBE}:{SBE+3}], s{sT0} offen")
    g("v_add_u32 v11, 0x14000, v7")
    g("s_waitcnt lgkmcnt(0)")
    g("s_barrier")
    g(f"s_mov_b32 s{sSPIN}, 0")
    for k in range(8):
        g(f"s_mov_b32 s{sT1}, {k*8192}")
        g(f"buffer_load_dwordx4 v[{GV+4*k}:{GV+4*k+3}], v12, s[{SG}:{SG+3}], s{sT1} offen sc1")
    g(f"s_and_b32 s{sT0}, s{sWV}, 3")
    g(f"s_lshr_b32 s{sT1}, s{sWV}, 2")
    g(f"s_lshl_b32 s{sT2}, s{sT1}, 3")
    g(f"v_add_u32 v3, s{sT2}, v3")
    g("v_and_b32 v5, 3, v2")
    g("v_lshlrev_b32 v5, 2, v5")
    g("v_xor_b32 v5, v5, v3")
    g("v_lshlrev_b32 v5, 4, v5")
    g("v_lshl_add_u32 v5, v4, 11, v5")
    g(f"s_lshl_b32 s{sT2}, s{sT0}, 14")
    g(f"v_add_u32 v5, s{sT2}, v5")
    D = 64
    for e in range(8):
        if e:
            g(f"v_xor_b32 v6, {e*16}, v5")
            a = 6
        else:
            a = 5
        g(f"ds_read_b128 v[{D+4*e}:{D+4*e+3}], v{a} offset:{e*256}")
    g(f"s_lshr_b32 s{sT2}, s{sT0}, 1")
    g(f"s_lshl_b32 s{sT2}, s{sT2}, 6")
    g(f"v_lshl_add_u32 v6, v3, 2, s{sT2}")
    g(f"s_and_b32 s{sT2}, s{sT0}, 1")
    g(f"s_lshl_b32 s{sT3}, s{sT2}, 7")
    g(f"v_lshl_add_u32 v7, v4, 4, s{sT3}")
    g("v_mov_b32 v9, 0x40000000")
    for rho in range(4):
        g(f"v_add_u32 v8, {rho}, v6")
        g(f"v_cmp_gt_u32 vcc, s{sLIM}, v8")
        g(f"v_lshl_add_u32 v{13+rho}, v8, 9, v7")
        g("s_nop 0")
        g(f"v_cndmask_b32 v{13+rho}, v9, v{13+rho}, vcc")
    g(f"s_lshl_b32 s{sT3}, s{sT2}, 9")
    g(f"s_add_u32 s{sT3}, s{sT3}, 0x14000")
    g(f"v_lshl_add_u32 v17, v4, 6, s{sT3}")
    c0 = -2.0 * 1.4426950408889634 * 0.7978845608028654
    c1 = c0 * 0.044715
    g(f"v_mov_b32 v28, {f32bits(c1):#x}")
    g(f"v_mov_b32 v29, {f32bits(c0):#x}")
    g.lab("L_gpoll")
    g(f"s_mov_b32 s{sMASK}, 0")
    g("s_waitcnt vmcnt(0)")
    for k in range(8):
        b = GV + 4 * k
        g(f"v_max3_u32 v3, v{b}, v{b+1}, v{b+2}")
        g(f"v_max_u32 v3, v3, v{b+3}")
        g("v_cmp_eq_u32 vcc, -1, v3")
        g("s_cmp_lg_u64 vcc, 0")
        g(f"s_cselect_b32 s{sT0}, {1<<k}, 0")
        g(f"s_or_b32 s{sMASK}, s{sMASK}, s{sT0}")
    g("s_cbranch_scc0 L_gdone")
    g(f"s_add_u32 s{sSPIN}, s{sSPIN}, 1")
    g(f"s_cmp_ge_u32 s{sSPIN}, {SPINMAX}")
    g("s_cbranch_scc1 L_gdone")
    if int(opts.get("gsleep", 0)):
        g(f"s_sleep {int(opts.get('gsleep', 0))}")
    for k in range(8):
        g(f"s_bitcmp1_b32 s{sMASK}, {k}")
        g(f"s_cbranch_scc0 L_gskip{k}")
        g(f"s_mov_b32 s{sT1}, {k*8192}")
        g(f"buffer_load_dwordx4 v[{GV+4*k}:{GV+4*k+3}], v12, s[{SG}:{SG+3}], s{sT1} offen sc1")
        g.lab(f"L_gskip{k}")
    g("s_branch L_gpoll")
    g.lab("L_gdone")
    stamp(4)
    for step in (16, 8, 4):
        for a in range(GV, GV + step, 2):
            g(f"v_pk_add_f32 v[{a}:{a+1}], v[{a}:{a+1}], v[{a+step}:{a+step+1}]")
    g(f"s_mov_b32 s{sT0}, {f32bits(1.0/7999.0):#x}")
    g(f"s_mov_b32 s{sT1}, {f32bits(1e-5):#x}")
    for i in range(4):
        g(f"v_add_f32_dpp v{GV+4+i}, v{GV+i}, v{GV+i} row_ror:8 row_mask:0xf bank_mask:0xf")
    g("v_lshlrev_b32 v18, 16, v30")
    g("v_and_b32 v19, 0xffff0000, v30")
    for i in range(4):
        g(f"v_mov_b32 v{GV+i}, v{GV+4+i}")
    g("v_lshlrev_b32 v20, 16, v31")
    g("v_and_b32 v21, 0xffff0000, v31")
    for i in range(4):
        g(f"v_permlane16_swap_b32 v{GV+i}, v{GV+4+i}")
    g("s_nop 0")
    for a in (0, 2):
        g(f"v_pk_add_f32 v[{GV+a}:{GV+a+1}], v[{GV+a}:{GV+a+1}], v[{GV+4+a}:{GV+5+a}]")
    for i in range(4):
        g(f"v_mov_b32 v{GV+4+i}, v{GV+i}")
    g("s_nop 1")
    for i in range(4):
        g(f"v_permlane32_swap_b32 v{GV+i}, v{GV+4+i}")
    g("s_nop 0")
    for a in (0, 2):
        g(f"v_pk_add_f32 v[{GV+a}:{GV+a+1}], v[{GV+a}:{GV+a+1}], v[{GV+4+a}:{GV+5+a}]")
    for cidx in range(2):
        S, Q = GV + 2 * cidx, GV + 2 * cidx + 1
        g(f"v_mul_f32 v{S}, s{sT0}, v{S}")
        g(f"v_mul_f32 v{Q}, s{sT0}, v{Q}")
        g(f"v_fma_f32 v{Q}, -v{S}, v{S}, v{Q}")
        g(f"v_max_f32 v{Q}, 0, v{Q}")
        g(f"v_add_f32 v{Q}, s{sT1}, v{Q}")
        g(f"v_rsq_f32 v{Q}, v{Q}")
        g("s_nop 0")
        g(f"v_mul_f32 v{22+2*cidx}, v{18+cidx}, v{Q}")
        g(f"v_fma_f32 v{23+2*cidx}, -v{S}, v{22+2*cidx}, v{20+cidx}")
    g("s_mov_b64 exec, 0xff")
    g("ds_write_b128 v11, v[22:25]")
    g("s_mov_b64 exec, -1")
    P = 32
    g("s_waitcnt lgkmcnt(0)")
    g("s_barrier")
    for k in range(4):
        g(f"ds_read_b128 v[{P+4*k}:{P+4*k+3}], v17 offset:{k*16}")
    g("s_waitcnt lgkmcnt(0)")
    stamp(5)
    BC = "op_sel:[0,0,1] op_sel_hi:[1,0,1]"
    U = 96
    for rp in range(2):
        for e in range(8):
            d = D + 4 * e + 2 * rp
            g(f"v_pk_fma_f32 v[{d}:{d+1}], v[{d}:{d+1}], v[{P+2*e}:{P+2*e+1}], v[{P+2*e}:{P+2*e+1}] {BC}")
        for e in range(8):
            d = D + 4 * e + 2 * rp
            u = U + 2 * e
            g(f"v_pk_mul_f32 v[{u}:{u+1}], v[{d}:{d+1}], v[{d}:{d+1}]")
        for e in range(8):
            u = U + 2 * e
            g(f"v_pk_fma_f32 v[{u}:{u+1}], v[{u}:{u+1}], v[28:29], v[28:29] {BC}")
        for e in range(8):
            d = D + 4 * e + 2 * rp
            u = U + 2 * e
            g(f"v_pk_mul_f32 v[{u}:{u+1}], v[{u}:{u+1}], v[{d}:{d+1}]")
        for e in range(16):
            g(f"v_exp_f32 v{U+e}, v{U+e}")
        for e in range(8):
            u = U + 2 * e
            g(f"v_pk_add_f32 v[{u}:{u+1}], v[{u}:{u+1}], 1.0 op_sel_hi:[1,0]")
        for e in range(16):
            g(f"v_rcp_f32 v{U+e}, v{U+e}")
        for e in range(8):
            d = D + 4 * e + 2 * rp
            u = U + 2 * e
            g(f"v_pk_mul_f32 v[{d}:{d+1}], v[{u}:{u+1}], v[{d}:{d+1}]")
        for r2 in range(2):
            rho = 2 * rp + r2
            O = 112 + 4 * rho
            for k in range(4):
                g(f"v_cvt_pk_bf16_f32 v{O+k}, v{D+4*(2*k)+rho}, v{D+4*(2*k+1)+rho}")
            g(f"buffer_store_dwordx4 v[{O}:{O+3}], v{13+rho}, s[{SO}:{SO+3}], s{sOB} offen{pol(opol)}")
    if stamps:
        g("s_waitcnt vmcnt(0)")
        stamp(6)
    g.lab("L_end")
    g("s_endpgm")
    g.c("---- the four workgroups without a tile arm the slots of one group each")
    g.lab("L_armer")
    g(f"s_sub_u32 s{sGRP}, s{sXCD}, 6")
    g(f"s_lshl_b32 s{sGRP}, s{sGRP}, 1")
    g(f"s_add_u32 s{sGRP}, s{sGRP}, s{sQ}")
    g("v_lshlrev_b32 v3, 4, v0")
    for i in range(4, 8):
        g(f"v_mov_b32 v{i}, -1")
    g("s_waitcnt lgkmcnt(0)")
    srd(SD, 14, 15, 256)
    g(f"s_lshl_b32 s{sT0}, s{sGRP}, 16")
    g(f"s_add_u32 s{SG}, s16, s{sT0}")
    g(f"s_addc_u32 s{SG+1}, s17, 0")
    g(f"s_and_b32 s{SG+1}, s{SG+1}, 0xffff")
    g(f"s_mov_b32 s{SG+2}, {63*1024}")
    g(f"s_mov_b32 s{SG+3}, 0x00020000")
    for k in range(8):
        g(f"s_mov_b32 s{sT1}, {k*8192}")
        g(f"buffer_store_dwordx4 v[4:7], v3, s[{SG}:{SG+3}], s{sT1} offen sc1")
    g("s_waitcnt vmcnt(0)")
    g("s_barrier")
    g("v_cmp_eq_u32 vcc, 0, v0")
    g(f"s_lshl_b32 s{sT0}, s{sGRP}, 6")
    g(f"v_mov_b32 v8, s{sT0}")
    g("v_mov_b32 v9, 1")
    g("s_and_saveexec_b64 s[4:5], vcc")
    g("s_cbranch_execz L_armend")
    g(f"buffer_store_dword v9, v8, s[{SD}:{SD+3}], 0 offen sc1")
    g.lab("L_armend")
    g("s_endpgm")

    out = HEADER
    out += "; @launch grid=(256,1,1) block=(512,1,1) lds=163840\n"
    out += '.amdgcn_target "amdgcn-amd-amdhsa--gfx950"\n.text\n'
    out += f".globl {NAME}_kernel\n.p2align 8\n.type {NAME}_kernel,@function\n{NAME}_kernel:\n"
    secs = {"head": []}
    cur = "head"
    for ln in g.L:
        if ln.startswith("@@SEC "):
            cur = ln[6:]
            secs[cur] = []
        else:
            secs[cur].append(ln)
    order = ["head", "loader", "compute", "join"]
    out += "\n".join(ln for k in order for ln in secs[k]) + "\nL_codeend:\n"
    nv = 168 if stamps else 160
    out += f""".section .rodata,"a"
.p2align 6
.amdhsa_kernel {NAME}_kernel
  .amdhsa_next_free_vgpr {nv}
  .amdhsa_next_free_sgpr 96
  .amdhsa_accum_offset {nv}
  .amdhsa_group_segment_fixed_size 0
  .amdhsa_kernarg_size 56
  .amdhsa_user_sgpr_count 2
  .amdhsa_user_sgpr_kernarg_segment_ptr 1
  .amdhsa_system_sgpr_workgroup_id_x 1
  .amdhsa_float_denorm_mode_32 3
.end_amdhsa_kernel
"""
    return out


if __name__ == "__main__":
    opts = {}
    outp = f"cdna_kernels/{NAME}.s"
    for a in sys.argv[1:]:
        if a.startswith("-o="):
            outp = a[3:]
        else:
            k, _, v = a.partition("=")
            if v in ("0", "1") and k not in ("R", "gsleep", "bpos", "pace", "pacemod"):
                v = bool(int(v))
            opts[k] = v
    open(outp, "w").write(build(opts))
    print("wrote", outp)
```

```python
import sys
import struct

NAME = "standalone__self_sup_conv_stem_wavlm__speech"

HEADER = """; Kernarg layout for this problem (56 bytes, ptrs only, base s[0:1]):
;   offset  48: d_ws      268435456 bytes workspace
"""


def f32bits(x):
    return struct.unpack("<I", struct.pack("<f", x))[0]


class Gen:
    def __init__(self, opts):
        self.o = opts
        self.L = []

    def __call__(self, s):
        self.L.append("    " + s)

    def lab(self, s):
        self.L.append(s + ":")

    def c(self, s):
        self.L.append("    ; " + s)


TAPS = {0: [0, 2, 1], 1: [1, 0, 2]}
XNEED = {0: ["C", "C", "H"], 1: ["C", "H", "H"]}


def build(opts):
    g = Gen(opts)
    xcpol = opts.get("xcpol", "")
    xhpol = opts.get("xhpol", "")
    opol = opts.get("opol", "nt")
    stamps = opts.get("stamps", False)
    R = int(opts.get("R", 3))
    SPINMAX = "0x40000"
    streams = opts.get("streams", "C01H2,C0H12").split(",")
    pol = lambda p: (" " + p.replace("+", " ")) if p else ""

    SX, SW, SO, SG, SD, SGA, SBE = 20, 24, 28, 32, 36, 40, 44
    sXCD, sR, sQ, sPI, sB, sT, sWV = 50, 51, 52, 53, 54, 55, 56
    sXB, sOB, sLIM, sGRP = 57, 58, 59, 60
    sI, sT0, sT1, sT2, sT3 = 61, 62, 63, 64, 65
    sFI = 66
    sLB = 67
    sMASK, sNEW = 68, 69
    sSPIN = 72
    sXC, sWC = 86, 90
    SST = 76
    sTS = 80
    VS = 160

    def srd(base, lo, hi, nbytes):
        g(f"s_mov_b32 s{base}, s{lo}")
        g(f"s_and_b32 s{base+1}, s{hi}, 0xffff")
        g(f"s_mov_b32 s{base+2}, {nbytes}")
        g(f"s_mov_b32 s{base+3}, 0x00020000")

    def stamp(slot):
        if not stamps:
            return
        g(f"s_memrealtime s[{sTS}:{sTS+1}]")
        if slot in (1, 2):
            g(f"s_memtime s[{sTS+2}:{sTS+3}]")
        g("s_waitcnt lgkmcnt(0)")
        g(f"v_mov_b32 v{VS}, s{sTS}")
        g(f"buffer_store_dword v{VS}, v{VS+1}, s[{SST}:{SST+3}], 0 offen offset:{slot*4}")
        if slot in (1, 2):
            g(f"v_mov_b32 v{VS}, s{sTS+2}")
            g(f"buffer_store_dword v{VS}, v{VS+1}, s[{SST}:{SST+3}], 0 offen offset:{(slot+7)*4}")

    if stamps:
        g(f"s_memrealtime s[{sTS+4}:{sTS+5}]")
    if opts.get("dbgt"):
        g("s_memrealtime s[76:77]")
        g("s_memtime s[78:79]")
    g("s_cmp_ge_u32 s2, 256")
    g("s_cbranch_scc1 L_end")
    g("s_load_dwordx8 s[4:11], s[0:1], 0")
    g("s_load_dwordx4 s[12:15], s[0:1], 32")
    g("s_load_dwordx2 s[16:17], s[0:1], 48")
    g(f"s_and_b32 s{sXCD}, s2, 7")
    g(f"s_lshr_b32 s{sR}, s2, 3")
    g(f"s_and_b32 s{sQ}, s{sR}, 1")
    g(f"s_lshr_b32 s{sPI}, s{sR}, 1")
    g(f"s_lshl_b32 s{sPI}, s{sPI}, 3")
    g(f"s_add_u32 s{sPI}, s{sPI}, s{sXCD}")
    g(f"s_cmp_lt_u32 s{sPI}, 2")
    g("s_cbranch_scc1 L_armer")
    g(f"s_sub_u32 s{sPI}, s{sPI}, 2")
    g(f"s_cmp_ge_u32 s{sPI}, 63")
    g(f"s_cselect_b32 s{sB}, 1, 0")
    g(f"s_mul_i32 s{sT}, s{sB}, 63")
    g(f"s_sub_u32 s{sT}, s{sPI}, s{sT}")
    g("v_lshrrev_b32 v1, 6, v0")
    g("v_and_b32 v2, 63, v0")
    g(f"v_readfirstlane_b32 s{sWV}, v1")
    g(f"s_mul_i32 s{sXB}, s{sB}, 16000")
    g(f"s_mul_i32 s{sT0}, s{sT}, 254")
    g(f"s_add_u32 s{sXB}, s{sXB}, s{sT0}")
    g(f"s_lshl_b32 s{sXB}, s{sXB}, 9")
    g(f"s_mul_i32 s{sOB}, s{sB}, 7999")
    g(f"s_mul_i32 s{sT0}, s{sT}, 127")
    g(f"s_add_u32 s{sOB}, s{sOB}, s{sT0}")
    g(f"s_lshl_b32 s{sOB}, s{sOB}, 9")
    g(f"s_lshl_b32 s{sT1}, s{sQ}, 8")
    g(f"s_add_u32 s{sOB}, s{sOB}, s{sT1}")
    g(f"s_sub_u32 s{sLIM}, 7999, s{sT0}")
    g(f"s_min_u32 s{sLIM}, s{sLIM}, 127")
    g(f"s_lshl_b32 s{sGRP}, s{sB}, 1")
    g(f"s_add_u32 s{sGRP}, s{sGRP}, s{sQ}")
    g(f"s_cmp_lt_u32 s{sWV}, 4")
    g("s_cbranch_scc1 L_compute")
    g.L.append("@@SEC compute")
    g.lab("L_compute")

    def common_srds():
        srd(SGA, 8, 9, 512)
        srd(SBE, 10, 11, 512)
        srd(SO, 12, 13, 8190976)
        srd(SD, 14, 15, 256)
        g(f"s_lshl_b32 s{sT0}, s{sGRP}, 16")
        g(f"s_add_u32 s{SG}, s16, s{sT0}")
        g(f"s_addc_u32 s{SG+1}, s17, 0")
        g(f"s_and_b32 s{SG+1}, s{SG+1}, 0xffff")
        g(f"s_mov_b32 s{SG+2}, {63*1024}")
        g(f"s_mov_b32 s{SG+3}, 0x00020000")
        if stamps:
            g(f"s_add_u32 s{SST}, s16, 0x100000")
            g(f"s_addc_u32 s{SST+1}, s17, 0")
            g(f"s_and_b32 s{SST+1}, s{SST+1}, 0xffff")
            g(f"s_mov_b32 s{SST+2}, 0x10000")
            g(f"s_mov_b32 s{SST+3}, 0x00020000")
            g(f"s_lshl_b32 s{sT0}, s2, 8")
            g(f"s_lshr_b32 s{sT1}, s{sWV}, 2")
            g(f"s_lshl_b32 s{sT1}, s{sT1}, 7")
            g(f"s_add_u32 s{sT0}, s{sT0}, s{sT1}")
            g(f"v_mov_b32 v{VS+1}, s{sT0}")
            g(f"v_and_b32 v{VS}, 0xff, v0")
            g(f"v_cmp_ne_u32 vcc, 0, v{VS}")
            g(f"v_mov_b32 v{VS}, 0x40000000")
            g("s_nop 1")
            g(f"v_cndmask_b32 v{VS+1}, v{VS+1}, v{VS}, vcc")

    vAa = [[12 + p * 2 + ks for ks in range(2)] for p in range(3)]
    vBa = [20, 21, 22, 23]
    FA = [32, 128]
    FB = [48, 144]
    ACC = 64

    def T(mt, nt):
        return ACC + (mt * 4 + nt) * 4

    g.c("---- compute wave setup")
    if opts.get("prio", False):
        g("s_setprio 3")
    if opts.get("cpf", False):
        g.c("pull the kernel's own code into L2 (64 B per lane)")
        g("s_getpc_b64 s[94:95]")
        g.lab("L_pc")
        g(f"s_sub_u32 s94, s94, L_pc-{NAME}_kernel")
        g("s_subb_u32 s95, s95, 0")
        g("v_lshlrev_b32 v30, 6, v0")
        g(f"v_min_u32 v30, L_codeend-{NAME}_kernel-4, v30")
        g("global_load_dword v31, v30, s[94:95]")
    g(f"s_lshr_b32 s{sT0}, s{sWV}, 1")
    g(f"s_and_b32 s{sT1}, s{sWV}, 1")
    g(f"s_lshl_b32 s{sT2}, s{sT0}, 6")
    g("v_and_b32 v3, 15, v2")
    g("v_lshrrev_b32 v8, 4, v2")
    g(f"v_add_u32 v9, s{sT2}, v3")
    for v in range(2):
        if v == 1:
            g("v_add_u32 v9, 1, v9")
        g("v_and_b32 v10, 6, v9")
        g("v_xor_b32 v10, v10, v8")
        g("v_lshlrev_b32 v10, 4, v10")
        g(f"v_lshl_add_u32 v{4+v}, v9, 7, v10")
    g("v_add_u32 v6, 0x4000, v4")
    g(f"s_cmp_eq_u32 s{sQ}, 0")
    g("s_cselect_b64 vcc, -1, 0")
    g(f"v_cndmask_b32 v{vAa[0][0]}, v6, v4, vcc")
    g(f"v_cndmask_b32 v{vAa[1][0]}, v4, v5, vcc")
    g(f"v_cndmask_b32 v{vAa[2][0]}, v5, v6, vcc")
    for p in range(3):
        g(f"v_xor_b32 v{vAa[p][1]}, 64, v{vAa[p][0]}")
    g("v_bfe_u32 v9, v2, 2, 2")
    g("v_lshl_add_u32 v10, v8, 3, v9")
    g("v_lshlrev_b32 v10, 8, v10")
    g("v_and_b32 v11, 3, v2")
    g("v_lshl_add_u32 v10, v11, 3, v10")
    g("v_and_b32 v11, 1, v8")
    g("v_lshl_or_b32 v11, v11, 2, v9")
    g(f"s_lshl_b32 s{sT2}, s{sT1}, 2")
    g(f"v_xor_b32 v11, s{sT2}, v11")
    g("v_lshl_add_u32 v10, v11, 5, v10")
    g(f"v_add_u32 v{vBa[0]}, 0x10000, v10")
    for nt in range(1, 4):
        g(f"v_xor_b32 v{vBa[nt]}, {nt*32}, v{vBa[0]}")
    for i in range(64):
        g(f"v_mov_b32 v{ACC+i}, 0")
    g("s_waitcnt lgkmcnt(0)")
    common_srds()
    if stamps:
        g(f"v_mov_b32 v{VS}, s{sTS+4}")
        g(f"buffer_store_dword v{VS}, v{VS+1}, s[{SST}:{SST+3}], 0 offen")

    RORD = ["A0", "B0a", "B0b", "B1a", "B1b", "A1", "B2a", "B2b", "B3a", "B3b", "A2", "A3"]
    MORD = [(0, 0), (0, 1), (1, 0), (1, 1), (0, 2), (0, 3), (1, 2), (1, 3),
            (2, 0), (2, 1), (2, 2), (2, 3), (3, 0), (3, 1), (3, 2), (3, 3)]

    def rd(n, which):
        if opts.get("noread"):
            return
        st = n & 1
        pos, ks = divmod(n % 6, 2)
        if which[0] == "A":
            mt = int(which[1])
            r = FA[st] + 4 * mt
            g(f"ds_read_b128 v[{r}:{r+3}], v{vAa[pos][ks]} offset:{mt*2048}")
        else:
            nt, j = int(which[1]), "ab".index(which[2])
            r = FB[st] + 4 * nt + 2 * j
            g(f"ds_read_b64_tr_b16 v[{r}:{r+1}], v{vBa[nt]} offset:{pos*16384+ks*8192+j*1024}")

    def mf(n, mt, nt):
        if opts.get("nomfma"):
            return
        st = n & 1
        t = T(mt, nt)
        fa, fb = FA[st] + 4 * mt, FB[st] + 4 * nt
        g(f"v_mfma_f32_16x16x32_bf16 v[{t}:{t+3}], v[{fa}:{fa+3}], v[{fb}:{fb+3}], v[{t}:{t+3}]")
        pace = int(opts.get("pace", -1))
        if pace >= 0 and (mt * 4 + nt) % int(opts.get("pacemod", 1)) == 0:
            g(f"s_nop {pace}")

    def tog(regs, val):
        for r in regs:
            g(f"v_xor_b32 v{r}, {val:#x}, v{r}")

    BPOS = int(opts.get("bpos", 4))
    g(f"s_mov_b32 s{sI}, 0")
    g("s_barrier")
    stamp(1)
    for wh in RORD:
        rd(0, wh)
    g.lab("L_loop")
    queue = [(0, wh) for wh in RORD]
    for n in range(6):
        last = (n & 1) == 1
        pending = list(RORD)
        first_rd = BPOS if last else 0
        for i, (mt, nt) in enumerate(MORD):
            needs = {(n, f"A{mt}"), (n, f"B{nt}a"), (n, f"B{nt}b")}
            p_ = max((k for k, t in enumerate(queue) if t in needs), default=-1)
            if p_ >= 0:
                g(f"s_waitcnt lgkmcnt({len(queue) - 1 - p_})")
                del queue[:p_ + 1]
            mf(n, mt, nt)
            if last and i == BPOS - 1:
                if n == 5:
                    tog(vBa, 0xc000)
                g("s_waitcnt lgkmcnt(0)")
                del queue[:]
                g("s_barrier")
            if i >= first_rd - (1 if last else 0) and pending and not (last and i < BPOS - 1):
                k = 1
                rem = 16 - i
                k = -(-len(pending) // rem)
                for _ in range(k):
                    wh = pending.pop(0)
                    rd(n + 1, wh)
                    queue.append(((n + 1) % 6, wh))
            if i == 13 and n in (2, 4, 5):
                tog(vAa[{2: 0, 4: 1, 5: 2}[n]], 0x8000)
        assert not pending
    assert queue == [(0, wh) for wh in RORD][-len(queue):]
    g(f"s_add_u32 s{sI}, s{sI}, 1")
    g(f"s_cmp_lt_u32 s{sI}, 4")
    g("s_cbranch_scc1 L_loop")
    stamp(2)

    g.c("---- statistics")
    g.lab("L_tail")
    g(f"s_lshr_b32 s{sT0}, s{sWV}, 1")
    g(f"s_and_b32 s{sT1}, s{sWV}, 1")
    g(f"s_lshl_b32 s{sT2}, s{sT0}, 6")
    g(f"s_add_u32 s{sT2}, s{sT2}, 48")
    g(f"v_lshl_add_u32 v9, v8, 2, s{sT2}")
    g(f"s_lshl_b32 s{sT2}, s{sT1}, 9")
    g(f"v_lshl_add_u32 v10, v2, 3, s{sT2}")
    g("v_add_u32 v11, 0x10000, v10")
    g("s_waitcnt lgkmcnt(0)")
    for mt in range(4):
        if mt == 3:
            for i in range(1, 4):
                g(f"v_add_u32 v26, {i}, v9")
                g(f"v_cmp_gt_u32 vcc, s{sLIM}, v26")
                g("s_nop 1")
                for nt in range(4):
                    r = T(3, nt) + i
                    g(f"v_cndmask_b32 v{r}, 0, v{r}, vcc")
        for h2 in range(2):
            for nt in range(4):
                sa, qa = 32 + 4 * nt, 34 + 4 * nt
                p = T(mt, nt) + 2 * h2
                if mt == 0 and h2 == 0:
                    g(f"v_pk_mul_f32 v[{qa}:{qa+1}], v[{p}:{p+1}], v[{p}:{p+1}]")
                    continue
                if mt == 0 and h2 == 1:
                    g(f"v_pk_add_f32 v[{sa}:{sa+1}], v[{p-2}:{p-1}], v[{p}:{p+1}]")
                else:
                    g(f"v_pk_add_f32 v[{sa}:{sa+1}], v[{sa}:{sa+1}], v[{p}:{p+1}]")
                g(f"v_pk_fma_f32 v[{qa}:{qa+1}], v[{p}:{p+1}], v[{p}:{p+1}], v[{qa}:{qa+1}]")
    for nt in range(4):
        g(f"v_add_f32 v{48+nt}, v{32+4*nt}, v{33+4*nt}")
        g(f"v_add_f32 v{52+nt}, v{34+4*nt}, v{35+4*nt}")
    g("s_nop 0")
    for bse in (48, 52):
        g(f"v_permlane32_swap_b32 v{bse}, v{bse+2}")
        g(f"v_permlane32_swap_b32 v{bse+1}, v{bse+3}")
    g("s_nop 0")
    for bse in (48, 52):
        g(f"v_add_f32 v{bse}, v{bse}, v{bse+2}")
        g(f"v_add_f32 v{bse+1}, v{bse+1}, v{bse+3}")
    g("s_nop 1")
    for bse in (48, 52):
        g(f"v_permlane16_swap_b32 v{bse}, v{bse+1}")
    g("s_nop 0")
    g("v_add_f32 v53, v52, v53")
    g("v_add_f32 v52, v48, v49")
    g(f"s_cmp_eq_u32 s{sT0}, 0")
    g("s_cbranch_scc1 L_wm0a")
    g("ds_write_b64 v11, v[52:53]")
    g("s_waitcnt lgkmcnt(0)")
    g.lab("L_wm0a")
    g("s_barrier")
    g(f"s_cmp_lg_u32 s{sT0}, 0")
    g("s_cbranch_scc1 L_wm1b")
    g("ds_read_b64 v[54:55], v11")
    g(f"s_lshl_b32 s{sT2}, s{sT}, 10")
    g("v_mov_b32 v56, 0x7fc00000")
    g("s_waitcnt lgkmcnt(0)")
    g("v_pk_add_f32 v[52:53], v[52:53], v[54:55]")
    g("v_cmp_eq_u32 vcc, -1, v52")
    g("s_nop 1")
    g("v_cndmask_b32 v52, v52, v56, vcc")
    g("v_cmp_eq_u32 vcc, -1, v53")
    g("s_nop 1")
    g("v_cndmask_b32 v53, v53, v56, vcc")
    g(f"buffer_store_dwordx2 v[52:53], v10, s[{SG}:{SG+3}], s{sT2} offen sc1")
    g.lab("L_wm1b")
    stamp(3)
    g.c("---- transpose the accumulators through LDS (fp32, column-major, swizzled)")
    g("v_and_b32 v9, 7, v3")
    g("v_lshrrev_b32 v10, 3, v3")
    g("v_lshlrev_b32 v10, 2, v10")
    g("v_xor_b32 v9, v9, v10")
    g("v_xor_b32 v9, v9, v8")
    g("v_lshlrev_b32 v9, 4, v9")
    g("v_lshl_add_u32 v9, v3, 8, v9")
    g(f"s_lshl_b32 s{sT2}, s{sWV}, 14")
    g(f"v_add_u32 v9, s{sT2}, v9")
    for mt in range(4):
        for par in range(2):
            x = ((4 * mt) ^ (8 * par)) * 16
            if x:
                g(f"v_xor_b32 v10, {x}, v9")
                a = 10
            else:
                a = 9
            for nt in (par, par + 2):
                r = T(mt, nt)
                g(f"ds_write_b128 v{a}, v[{r}:{r+3}] offset:{nt*4096}")
    g.L.append("@@SEC loader")

    g(f"s_sub_u32 s{sT3}, s{sWV}, 4")
    g("v_lshrrev_b32 v3, 3, v2")
    g(f"s_lshl_b32 s{sT0}, s{sT3}, 5")
    g(f"v_add_u32 v3, s{sT0}, v3")
    g("v_lshlrev_b32 v3, 10, v3")
    g("v_lshrrev_b32 v4, 4, v2")
    g("v_bfe_u32 v5, v2, 4, 2")
    g("v_lshlrev_b32 v5, 1, v5")
    g("v_and_b32 v6, 7, v2")
    g("v_xor_b32 v5, v5, v6")
    g("v_lshl_add_u32 v16, v5, 4, v3")
    for j in range(1, 4):
        g(f"v_add_u32 v{16+j}, {j*(8192-1024)}, v16")
    g(f"s_lshl_b32 s{sT0}, s{sT3}, 4")
    g(f"v_add_u32 v3, s{sT0}, v4")
    g("v_lshlrev_b32 v3, 9, v3")
    g("v_lshlrev_b32 v5, 1, v4")
    g("v_and_b32 v6, 15, v2")
    g("v_xor_b32 v5, v5, v6")
    g("v_lshl_add_u32 v3, v5, 4, v3")
    g(f"s_lshl_b32 s{sT0}, s{sQ}, 8")
    g(f"v_add_u32 v20, s{sT0}, v3")
    g("v_add_u32 v21, 1024, v20")
    g("v_xor_b32 v22, 128, v20")
    g("v_add_u32 v23, 3072, v22")
    g("v_add_u32 v22, 2048, v22")
    sLX, sLW, sXc, sWc, sRot = 67, 86, 87, 88, 89
    sPC, sPH, sGC, sGH = 90, 91, 92, 93
    sTP = [68, 69, 70]
    g(f"s_lshl_b32 s{sLX}, s{sT3}, 12")
    g(f"s_add_u32 s{sLW}, s{sLX}, 0x10000")
    g(f"s_lshl_b32 s{sPC}, s{sQ}, 14")
    g(f"s_xor_b32 s{sPH}, s{sPC}, 0x4000")
    g(f"s_lshl_b32 s{sGC}, s{sQ}, 9")
    g(f"s_xor_b32 s{sGH}, s{sGC}, 0x200")
    g(f"s_cmp_eq_u32 s{sQ}, 0")
    for p in range(3):
        g(f"s_cselect_b32 s{sTP[p]}, {TAPS[0][p]*131072}, {TAPS[1][p]*131072}" if TAPS[0][p] * TAPS[1][p] == 0 else
          f"s_cselect_b32 s{sTP[p]}, 1, 2")
    g(f"s_lshl_b32 s{sTP[2]}, s{sTP[2]}, 17")
    g(f"s_lshr_b32 s{sRot}, s{sR}, 1")
    g(f"s_mov_b32 s{sI}, 0")
    if stamps:
        g("s_memrealtime s[72:73]")
    g("s_waitcnt lgkmcnt(0)")
    if stamps:
        g("s_memrealtime s[74:75]")
    srd(SX, 4, 5, 16384000)
    srd(SW, 6, 7, 393216)

    def issue(kind):
        if opts.get("noload"):
            return
        if kind in "CH":
            p = pol(xcpol if kind == "C" else xhpol)
            g(f"s_add_u32 m0, s{sLX}, s{sPC if kind == 'C' else sPH}")
            g(f"s_add_u32 s{sT0}, s{sXc}, s{sGC if kind == 'C' else sGH}")
            for j in range(4):
                g(f"buffer_load_dwordx4 v{16+j}, s[{SX}:{SX+3}], s{sT0} offen offset:{j*1024}{p} lds")
        else:
            pos = int(kind)
            g(f"s_add_u32 m0, s{sLW}, {pos*16384}")
            g(f"s_add_u32 s{sT0}, s{sWc}, s{sTP[pos]}")
            for j in range(4):
                g(f"buffer_load_dwordx4 v{20+j}, s[{SW}:{SW+3}], s{sT0} offen offset:{j*1024} lds")

    W_ = 63 if opts.get("noload") else 12
    g.lab("L_lloop")
    g(f"s_add_u32 s{sT1}, s{sRot}, s{sI}")
    g(f"s_and_b32 s{sT1}, s{sT1}, 3")
    g(f"s_lshl_b32 s{sWc}, s{sT1}, 15")
    g(f"s_lshl_b32 s{sT1}, s{sT1}, 7")
    g(f"s_add_u32 s{sXc}, s{sXB}, s{sT1}")
    issue("C")
    issue("0")
    g(f"s_cmp_eq_u32 s{sI}, 0")
    g("s_cbranch_scc1 L_ls1")
    g(f"s_waitcnt vmcnt({W_})")
    g("s_barrier")
    g.lab("L_ls1")
    issue("H")
    g(f"s_cmp_eq_u32 s{sI}, 0")
    g("s_cbranch_scc1 L_ls2")
    g(f"s_waitcnt vmcnt({W_})")
    g("s_barrier")
    g.lab("L_ls2")
    issue("1")
    issue("2")
    g(f"s_xor_b32 s{sLX}, s{sLX}, 0x8000")
    g(f"s_xor_b32 s{sLW}, s{sLW}, 0xc000")
    g(f"s_add_u32 s{sI}, s{sI}, 1")
    g(f"s_cmp_lt_u32 s{sI}, 4")
    g(f"s_waitcnt vmcnt({W_})")
    g("s_barrier")
    g("s_cbranch_scc1 L_lloop")
    common_srds()
    if stamps:
        g(f"v_mov_b32 v{VS}, s74")
        g(f"buffer_store_dword v{VS}, v{VS+1}, s[{SST}:{SST+3}], 0 offen")
        g(f"v_mov_b32 v{VS}, s72")
        g(f"buffer_store_dword v{VS}, v{VS+1}, s[{SST}:{SST+3}], 0 offen offset:12")
    g(f"s_lshl_b32 s{sT0}, s{sGRP}, 6")
    g(f"v_mov_b32 v24, s{sT0}")
    g(f"buffer_load_dword v5, v24, s[{SD}:{SD+3}], 0 offen sc1")
    g("s_waitcnt vmcnt(5)")
    g("s_barrier")
    g("s_waitcnt vmcnt(1)")
    stamp(1)
    g("s_barrier")
    g.lab("L_ljoin")
    g("s_barrier")
    g.c("wait until every workgroup of the group has armed its slot")
    g(f"s_mov_b32 s{sSPIN}, 0")
    g(f"s_waitcnt vmcnt({1 if (opts.get('tpf', False) and not stamps) else 0})")
    g.lab("L_flagpoll")
    g("v_cmp_eq_u32 vcc, 0, v5")
    g(f"s_add_u32 s{sSPIN}, s{sSPIN}, 1")
    g(f"s_cmp_ge_u32 s{sSPIN}, {SPINMAX}")
    g("s_cbranch_scc1 L_noflagwait")
    g("s_cbranch_vccz L_noflagwait")
    g("s_sleep 16")
    g(f"buffer_load_dword v5, v24, s[{SD}:{SD+3}], 0 offen sc1")
    g("s_waitcnt vmcnt(0)")
    g("s_branch L_flagpoll")
    g.lab("L_noflagwait")
    stamp(2)
    g("s_barrier")

    g("s_branch L_join")
    g.L.append("@@SEC join")
    g.lab("L_join")
    GV = 96
    g("v_and_b32 v4, 7, v2")
    g("v_lshrrev_b32 v3, 3, v2")
    g(f"s_lshl_b32 s{sT0}, s{sWV}, 7")
    g(f"v_lshl_add_u32 v7, v4, 4, s{sT0}")
    g("v_lshl_add_u32 v12, v3, 10, v7")
    g("v_lshrrev_b32 v5, 2, v7")
    g(f"s_lshl_b32 s{sT0}, s{sQ}, 8")
    g(f"buffer_load_dword v30, v5, s[{SGA}:{SGA+3}], s{sT0} offen")
    g(f"buffer_load_dword v31, v5, s[{SBE}:{SBE+3}], s{sT0} offen")
    g("v_add_u32 v11, 0x14000, v7")
    g("s_waitcnt lgkmcnt(0)")
    g("s_barrier")
    g(f"s_mov_b32 s{sSPIN}, 0")

    def gfirst():
        for k in range(8):
            g(f"s_mov_b32 s{sT1}, {k*8192}")
            g(f"buffer_load_dwordx4 v[{GV+4*k}:{GV+4*k+3}], v12, s[{SG}:{SG+3}], s{sT1} offen{pol(gpol)}")
    gpol = opts.get("gpol", "sc1")
    if not opts.get("glate"):
        gfirst()
    g(f"s_and_b32 s{sT0}, s{sWV}, 3")
    g(f"s_lshr_b32 s{sT1}, s{sWV}, 2")
    g(f"s_lshl_b32 s{sT2}, s{sT1}, 3")
    g(f"v_add_u32 v3, s{sT2}, v3")
    g("v_and_b32 v5, 3, v2")
    g("v_lshlrev_b32 v5, 2, v5")
    g("v_xor_b32 v5, v5, v3")
    g("v_lshlrev_b32 v5, 4, v5")
    g("v_lshl_add_u32 v5, v4, 11, v5")
    g(f"s_lshl_b32 s{sT2}, s{sT0}, 14")
    g(f"v_add_u32 v5, s{sT2}, v5")
    D = 64
    for e in range(8):
        if e:
            g(f"v_xor_b32 v6, {e*16}, v5")
            a = 6
        else:
            a = 5
        g(f"ds_read_b128 v[{D+4*e}:{D+4*e+3}], v{a} offset:{e*256}")
    g(f"s_lshr_b32 s{sT2}, s{sT0}, 1")
    g(f"s_lshl_b32 s{sT2}, s{sT2}, 6")
    g(f"v_lshl_add_u32 v6, v3, 2, s{sT2}")
    g(f"s_and_b32 s{sT2}, s{sT0}, 1")
    g(f"s_lshl_b32 s{sT3}, s{sT2}, 7")
    g(f"v_lshl_add_u32 v7, v4, 4, s{sT3}")
    g("v_mov_b32 v9, 0x40000000")
    for rho in range(4):
        g(f"v_add_u32 v8, {rho}, v6")
        g(f"v_cmp_gt_u32 vcc, s{sLIM}, v8")
        g(f"v_lshl_add_u32 v{13+rho}, v8, 9, v7")
        g("s_nop 0")
        g(f"v_cndmask_b32 v{13+rho}, v9, v{13+rho}, vcc")
    g(f"s_lshl_b32 s{sT3}, s{sT2}, 9")
    g(f"s_add_u32 s{sT3}, s{sT3}, 0x14000")
    g(f"v_lshl_add_u32 v17, v4, 6, s{sT3}")
    c0 = -2.0 * 1.4426950408889634 * 0.7978845608028654
    c1 = c0 * 0.044715
    g(f"v_mov_b32 v28, {f32bits(c1):#x}")
    g(f"v_mov_b32 v29, {f32bits(c0):#x}")
    if opts.get("glate"):
        if int(opts.get("gdelay", 0)):
            g(f"s_sleep {int(opts.get('gdelay', 0))}")
        gfirst()
    g.lab("L_gpoll")
    g(f"s_mov_b32 s{sMASK}, 0")
    g("s_waitcnt vmcnt(0)")
    for k in range(8):
        b = GV + 4 * k
        g(f"v_max3_u32 v3, v{b}, v{b+1}, v{b+2}")
        g(f"v_max_u32 v3, v3, v{b+3}")
        g("v_cmp_eq_u32 vcc, -1, v3")
        g("s_cmp_lg_u64 vcc, 0")
        g(f"s_cselect_b32 s{sT0}, {1<<k}, 0")
        g(f"s_or_b32 s{sMASK}, s{sMASK}, s{sT0}")
    g("s_cbranch_scc0 L_gdone")
    g(f"s_add_u32 s{sSPIN}, s{sSPIN}, 1")
    g(f"s_cmp_ge_u32 s{sSPIN}, {SPINMAX}")
    g("s_cbranch_scc1 L_gdone")
    if int(opts.get("gsleep", 0)):
        g(f"s_sleep {int(opts.get('gsleep', 0))}")
    for k in range(8):
        g(f"s_bitcmp1_b32 s{sMASK}, {k}")
        g(f"s_cbranch_scc0 L_gskip{k}")
        g(f"s_mov_b32 s{sT1}, {k*8192}")
        g(f"buffer_load_dwordx4 v[{GV+4*k}:{GV+4*k+3}], v12, s[{SG}:{SG+3}], s{sT1} offen{pol(opts.get('gpol2', gpol))}")
        g.lab(f"L_gskip{k}")
    g("s_branch L_gpoll")
    g.lab("L_gdone")
    stamp(4)
    for step in (16, 8, 4):
        for a in range(GV, GV + step, 2):
            g(f"v_pk_add_f32 v[{a}:{a+1}], v[{a}:{a+1}], v[{a+step}:{a+step+1}]")
    g(f"s_mov_b32 s{sT0}, {f32bits(1.0/7999.0):#x}")
    g(f"s_mov_b32 s{sT1}, {f32bits(1e-5):#x}")
    for i in range(4):
        g(f"v_add_f32_dpp v{GV+4+i}, v{GV+i}, v{GV+i} row_ror:8 row_mask:0xf bank_mask:0xf")
    g("v_lshlrev_b32 v18, 16, v30")
    g("v_and_b32 v19, 0xffff0000, v30")
    for i in range(4):
        g(f"v_mov_b32 v{GV+i}, v{GV+4+i}")
    g("v_lshlrev_b32 v20, 16, v31")
    g("v_and_b32 v21, 0xffff0000, v31")
    for i in range(4):
        g(f"v_permlane16_swap_b32 v{GV+i}, v{GV+4+i}")
    g("s_nop 0")
    for a in (0, 2):
        g(f"v_pk_add_f32 v[{GV+a}:{GV+a+1}], v[{GV+a}:{GV+a+1}], v[{GV+4+a}:{GV+5+a}]")
    for i in range(4):
        g(f"v_mov_b32 v{GV+4+i}, v{GV+i}")
    g("s_nop 1")
    for i in range(4):
        g(f"v_permlane32_swap_b32 v{GV+i}, v{GV+4+i}")
    g("s_nop 0")
    for a in (0, 2):
        g(f"v_pk_add_f32 v[{GV+a}:{GV+a+1}], v[{GV+a}:{GV+a+1}], v[{GV+4+a}:{GV+5+a}]")
    for cidx in range(2):
        S, Q = GV + 2 * cidx, GV + 2 * cidx + 1
        g(f"v_mul_f32 v{S}, s{sT0}, v{S}")
        g(f"v_mul_f32 v{Q}, s{sT0}, v{Q}")
        g(f"v_fma_f32 v{Q}, -v{S}, v{S}, v{Q}")
        g(f"v_max_f32 v{Q}, 0, v{Q}")
        g(f"v_add_f32 v{Q}, s{sT1}, v{Q}")
        g(f"v_rsq_f32 v{Q}, v{Q}")
        g("s_nop 0")
        g(f"v_mul_f32 v{22+2*cidx}, v{18+cidx}, v{Q}")
        g(f"v_fma_f32 v{23+2*cidx}, -v{S}, v{22+2*cidx}, v{20+cidx}")
    g("s_mov_b64 exec, 0xff")
    g("ds_write_b128 v11, v[22:25]")
    g("s_mov_b64 exec, -1")
    P = 32
    g("s_waitcnt lgkmcnt(0)")
    g("s_barrier")
    for k in range(4):
        g(f"ds_read_b128 v[{P+4*k}:{P+4*k+3}], v17 offset:{k*16}")
    g("s_waitcnt lgkmcnt(0)")
    stamp(5)
    BC = "op_sel:[0,0,1] op_sel_hi:[1,0,1]"
    U = 96
    for rp in range(2):
        for e in range(8):
            d = D + 4 * e + 2 * rp
            g(f"v_pk_fma_f32 v[{d}:{d+1}], v[{d}:{d+1}], v[{P+2*e}:{P+2*e+1}], v[{P+2*e}:{P+2*e+1}] {BC}")
        for e in range(8):
            d = D + 4 * e + 2 * rp
            u = U + 2 * e
            g(f"v_pk_mul_f32 v[{u}:{u+1}], v[{d}:{d+1}], v[{d}:{d+1}]")
        for e in range(8):
            u = U + 2 * e
            g(f"v_pk_fma_f32 v[{u}:{u+1}], v[{u}:{u+1}], v[28:29], v[28:29] {BC}")
        for e in range(8):
            d = D + 4 * e + 2 * rp
            u = U + 2 * e
            g(f"v_pk_mul_f32 v[{u}:{u+1}], v[{u}:{u+1}], v[{d}:{d+1}]")
        for e in range(16):
            g(f"v_exp_f32 v{U+e}, v{U+e}")
        for e in range(8):
            u = U + 2 * e
            g(f"v_pk_add_f32 v[{u}:{u+1}], v[{u}:{u+1}], 1.0 op_sel_hi:[1,0]")
        for e in range(16):
            g(f"v_rcp_f32 v{U+e}, v{U+e}")
        for e in range(8):
            d = D + 4 * e + 2 * rp
            u = U + 2 * e
            g(f"v_pk_mul_f32 v[{d}:{d+1}], v[{u}:{u+1}], v[{d}:{d+1}]")
        for r2 in range(2):
            rho = 2 * rp + r2
            O = 112 + 4 * rho
            for k in range(4):
                g(f"v_cvt_pk_bf16_f32 v{O+k}, v{D+4*(2*k)+rho}, v{D+4*(2*k+1)+rho}")
            g(f"buffer_store_dwordx4 v[{O}:{O+3}], v{13+rho}, s[{SO}:{SO+3}], s{sOB} offen{pol(opol)}")
    if stamps:
        g("s_waitcnt vmcnt(0)")
        stamp(6)
    if opts.get("dbgt"):
        g("s_waitcnt vmcnt(0)")
        g("s_memrealtime s[80:81]")
        g("s_memtime s[82:83]")
        g("s_waitcnt lgkmcnt(0)")
        g("s_and_b32 s84, s2, 0xf9")
        g("s_cmp_lg_u32 s84, 0")
        g("s_cbranch_scc1 L_end")
        g(f"s_cmp_lg_u32 s{sWV}, 4")
        g("s_cbranch_scc1 L_end")
        g("s_sub_u32 s80, s80, s76")
        g("s_sub_u32 s82, s82, s78")
        g("v_mov_b32 v4, s80")
        g("v_mov_b32 v5, s82")
        g("s_lshl_b32 s84, s2, 2")
        g("s_add_u32 s84, s84, 8")
        g("v_mov_b32 v6, s84")
        g("s_mov_b64 exec, 1")
        g(f"buffer_store_dwordx2 v[4:5], v6, s[{SD}:{SD+3}], 0 offen")
    g.lab("L_end")
    g("s_endpgm")
    g.c("---- the four workgroups without a tile arm the slots of one group each")
    g.lab("L_armer")
    g(f"s_lshl_b32 s{sGRP}, s{sPI}, 1")
    g(f"s_add_u32 s{sGRP}, s{sGRP}, s{sQ}")
    g("v_lshlrev_b32 v3, 4, v0")
    for i in range(4, 8):
        g(f"v_mov_b32 v{i}, -1")
    g("s_waitcnt lgkmcnt(0)")
    srd(SD, 14, 15, 256)
    g(f"s_lshl_b32 s{sT0}, s{sGRP}, 16")
    g(f"s_add_u32 s{SG}, s16, s{sT0}")
    g(f"s_addc_u32 s{SG+1}, s17, 0")
    g(f"s_and_b32 s{SG+1}, s{SG+1}, 0xffff")
    g(f"s_mov_b32 s{SG+2}, {63*1024}")
    g(f"s_mov_b32 s{SG+3}, 0x00020000")
    for k in range(8):
        g(f"s_mov_b32 s{sT1}, {k*8192}")
        g(f"buffer_store_dwordx4 v[4:7], v3, s[{SG}:{SG+3}], s{sT1} offen sc1")
    g("s_waitcnt vmcnt(0)")
    g("s_barrier")
    g("v_cmp_eq_u32 vcc, 0, v0")
    g(f"s_lshl_b32 s{sT0}, s{sGRP}, 6")
    g(f"v_mov_b32 v8, s{sT0}")
    g("v_mov_b32 v9, 1")
    g("s_and_saveexec_b64 s[4:5], vcc")
    g("s_cbranch_execz L_armend")
    g(f"buffer_store_dword v9, v8, s[{SD}:{SD+3}], 0 offen sc1")
    g.lab("L_armend")
    g("s_endpgm")

    out = HEADER + """;
; Strided conv (K=3, s=2) as a GEMM (M=2*7999, N=256, K=768) + per-(batch,channel) normalisation + GELU, one launch.
;  * 252 workgroups own a tile of 127 output rows x 128 channels; waves 0-3 run 16x16x32 bf16 MFMAs out of LDS,
;    waves 4-7 stream x (even/odd row planes) and w into LDS with LDS-DMA, one s_barrier per 64-channel tap stage.
;  * every tile publishes its column sums / sums of squares (fp32) in d_ws; 4 helper workgroups first fill those
;    slots with a sentinel and raise a flag in d_debug, so readers can tell this launch's records from old data.
;  * accumulators are transposed through LDS while the records travel; then scale/shift, GELU(tanh), bf16 stores.
; Generated by gen9.py (own generator script).
"""
    out += "; @launch grid=(256,1,1) block=(512,1,1) lds=163840\n"
    out += '.amdgcn_target "amdgcn-amd-amdhsa--gfx950"\n.text\n'
    out += f".globl {NAME}_kernel\n.p2align 8\n.type {NAME}_kernel,@function\n{NAME}_kernel:\n"
    secs = {"head": []}
    cur = "head"
    for ln in g.L:
        if ln.startswith("@@SEC "):
            cur = ln[6:]
            secs[cur] = []
        else:
            secs[cur].append(ln)
    order = ["head", "loader", "compute", "join"]
    out += "\n".join(ln for k in order for ln in secs[k]) + "\nL_codeend:\n"
    nv = 168 if stamps else 160
    out += f""".section .rodata,"a"
.p2align 6
.amdhsa_kernel {NAME}_kernel
  .amdhsa_next_free_vgpr {nv}
  .amdhsa_next_free_sgpr 96
  .amdhsa_accum_offset {nv}
  .amdhsa_group_segment_fixed_size 0
  .amdhsa_kernarg_size 56
  .amdhsa_user_sgpr_count 2
  .amdhsa_user_sgpr_kernarg_segment_ptr 1
  .amdhsa_system_sgpr_workgroup_id_x 1
  .amdhsa_float_denorm_mode_32 3
.end_amdhsa_kernel
"""
    return out


if __name__ == "__main__":
    opts = {}
    outp = f"cdna_kernels/{NAME}.s"
    for a in sys.argv[1:]:
        if a.startswith("-o="):
            outp = a[3:]
        else:
            k, _, v = a.partition("=")
            if v in ("0", "1") and k not in ("R", "gsleep", "bpos", "pace", "pacemod", "gdelay"):
                v = bool(int(v))
            opts[k] = v
    open(outp, "w").write(build(opts))
    print("wrote", outp)
```

```python
import sys
import struct

NAME = "standalone__self_sup_conv_stem_wavlm__speech"

HEADER = """; Kernarg layout for this problem (56 bytes, ptrs only, base s[0:1]):
;   offset  48: d_ws      268435456 bytes workspace
"""


def f32bits(x):
    return struct.unpack("<I", struct.pack("<f", x))[0]


class Gen:
    def __init__(self, opts):
        self.o = opts
        self.L = []

    def __call__(self, s):
        self.L.append("    " + s)

    def lab(self, s):
        self.L.append(s + ":")

    def c(self, s):
        self.L.append("    ; " + s)


TAPS = {0: [0, 2, 1], 1: [1, 0, 2]}
XNEED = {0: ["C", "C", "H"], 1: ["C", "H", "H"]}


def build(opts):
    g = Gen(opts)
    xcpol = opts.get("xcpol", "")
    xhpol = opts.get("xhpol", "")
    opol = opts.get("opol", "nt")
    stamps = opts.get("stamps", False)
    R = int(opts.get("R", 3))
    SPINMAX = "0x40000"
    streams = opts.get("streams", "C01H2,C0H12").split(",")
    pol = lambda p: (" " + p.replace("+", " ")) if p else ""

    SX, SW, SO, SG, SD, SGA, SBE = 20, 24, 28, 32, 36, 40, 44
    sXCD, sR, sQ, sPI, sB, sT, sWV = 50, 51, 52, 53, 54, 55, 56
    sXB, sOB, sLIM, sGRP = 57, 58, 59, 60
    sI, sT0, sT1, sT2, sT3 = 61, 62, 63, 64, 65
    sFI = 66
    sLB = 67
    sMASK, sNEW = 68, 69
    sSPIN = 72
    sXC, sWC = 86, 90
    SST = 76
    sTS = 80
    VS = 160

    def srd(base, lo, hi, nbytes):
        g(f"s_mov_b32 s{base}, s{lo}")
        g(f"s_and_b32 s{base+1}, s{hi}, 0xffff")
        g(f"s_mov_b32 s{base+2}, {nbytes}")
        g(f"s_mov_b32 s{base+3}, 0x00020000")

    def stamp(slot):
        if not stamps:
            return
        g(f"s_memrealtime s[{sTS}:{sTS+1}]")
        if slot in (1, 2):
            g(f"s_memtime s[{sTS+2}:{sTS+3}]")
        g("s_waitcnt lgkmcnt(0)")
        g(f"v_mov_b32 v{VS}, s{sTS}")
        g(f"buffer_store_dword v{VS}, v{VS+1}, s[{SST}:{SST+3}], 0 offen offset:{slot*4}")
        if slot in (1, 2):
            g(f"v_mov_b32 v{VS}, s{sTS+2}")
            g(f"buffer_store_dword v{VS}, v{VS+1}, s[{SST}:{SST+3}], 0 offen offset:{(slot+7)*4}")

    if stamps:
        g(f"s_memrealtime s[{sTS+4}:{sTS+5}]")
    if opts.get("dbgt"):
        g("s_memrealtime s[76:77]")
        g("s_memtime s[78:79]")
    g("s_cmp_ge_u32 s2, 256")
    g("s_cbranch_scc1 L_end")
    g("s_load_dwordx8 s[4:11], s[0:1], 0")
    g("s_load_dwordx4 s[12:15], s[0:1], 32")
    g("s_load_dwordx2 s[16:17], s[0:1], 48")
    g(f"s_and_b32 s{sXCD}, s2, 7")
    g(f"s_lshr_b32 s{sR}, s2, 3")
    g(f"s_and_b32 s{sQ}, s{sR}, 1")
    g(f"s_lshr_b32 s{sPI}, s{sR}, 1")
    g(f"s_lshl_b32 s{sPI}, s{sPI}, 3")
    g(f"s_add_u32 s{sPI}, s{sPI}, s{sXCD}")
    g(f"s_cmp_lt_u32 s{sPI}, 2")
    g("s_cbranch_scc1 L_armer")
    g(f"s_sub_u32 s{sPI}, s{sPI}, 2")
    g(f"s_cmp_ge_u32 s{sPI}, 63")
    g(f"s_cselect_b32 s{sB}, 1, 0")
    g(f"s_mul_i32 s{sT}, s{sB}, 63")
    g(f"s_sub_u32 s{sT}, s{sPI}, s{sT}")
    g("v_lshrrev_b32 v1, 6, v0")
    g("v_and_b32 v2, 63, v0")
    g(f"v_readfirstlane_b32 s{sWV}, v1")
    g(f"s_mul_i32 s{sXB}, s{sB}, 16000")
    g(f"s_mul_i32 s{sT0}, s{sT}, 254")
    g(f"s_add_u32 s{sXB}, s{sXB}, s{sT0}")
    g(f"s_lshl_b32 s{sXB}, s{sXB}, 9")
    g(f"s_mul_i32 s{sOB}, s{sB}, 7999")
    g(f"s_mul_i32 s{sT0}, s{sT}, 127")
    g(f"s_add_u32 s{sOB}, s{sOB}, s{sT0}")
    g(f"s_lshl_b32 s{sOB}, s{sOB}, 9")
    g(f"s_lshl_b32 s{sT1}, s{sQ}, 8")
    g(f"s_add_u32 s{sOB}, s{sOB}, s{sT1}")
    g(f"s_sub_u32 s{sLIM}, 7999, s{sT0}")
    g(f"s_min_u32 s{sLIM}, s{sLIM}, 127")
    g(f"s_lshl_b32 s{sGRP}, s{sB}, 1")
    g(f"s_add_u32 s{sGRP}, s{sGRP}, s{sQ}")
    g(f"s_cmp_lt_u32 s{sWV}, 4")
    g("s_cbranch_scc1 L_compute")
    g.L.append("@@SEC compute")
    g.lab("L_compute")

    def common_srds():
        srd(SGA, 8, 9, 512)
        srd(SBE, 10, 11, 512)
        srd(SO, 12, 13, 8190976)
        srd(SD, 14, 15, 256)
        g(f"s_lshl_b32 s{sT0}, s{sGRP}, 16")
        g(f"s_add_u32 s{SG}, s16, s{sT0}")
        g(f"s_addc_u32 s{SG+1}, s17, 0")
        g(f"s_and_b32 s{SG+1}, s{SG+1}, 0xffff")
        g(f"s_mov_b32 s{SG+2}, {63*1024}")
        g(f"s_mov_b32 s{SG+3}, 0x00020000")
        if stamps:
            g(f"s_add_u32 s{SST}, s16, 0x100000")
            g(f"s_addc_u32 s{SST+1}, s17, 0")
            g(f"s_and_b32 s{SST+1}, s{SST+1}, 0xffff")
            g(f"s_mov_b32 s{SST+2}, 0x10000")
            g(f"s_mov_b32 s{SST+3}, 0x00020000")
            g(f"s_lshl_b32 s{sT0}, s2, 8")
            g(f"s_lshr_b32 s{sT1}, s{sWV}, 2")
            g(f"s_lshl_b32 s{sT1}, s{sT1}, 7")
            g(f"s_add_u32 s{sT0}, s{sT0}, s{sT1}")
            g(f"v_mov_b32 v{VS+1}, s{sT0}")
            g(f"v_and_b32 v{VS}, 0xff, v0")
            g(f"v_cmp_ne_u32 vcc, 0, v{VS}")
            g(f"v_mov_b32 v{VS}, 0x40000000")
            g("s_nop 1")
            g(f"v_cndmask_b32 v{VS+1}, v{VS+1}, v{VS}, vcc")

    def gb_loads():
        g("v_and_b32 v29, 7, v2")
        g(f"s_lshl_b32 s{sT0}, s{sWV}, 5")
        g(f"v_lshl_add_u32 v29, v29, 2, s{sT0}")
        g(f"s_lshl_b32 s{sT0}, s{sQ}, 8")
        g(f"buffer_load_dword v30, v29, s[{SGA}:{SGA+3}], s{sT0} offen")
        g(f"buffer_load_dword v31, v29, s[{SBE}:{SBE+3}], s{sT0} offen")

    vAa = [[12 + p * 2 + ks for ks in range(2)] for p in range(3)]
    vBa = [20, 21, 22, 23]
    FA = [32, 128]
    FB = [48, 144]
    ACC = 64

    def T(mt, nt):
        return ACC + (mt * 4 + nt) * 4

    g.c("---- compute wave setup")
    if opts.get("prio", False):
        g("s_setprio 3")
    if opts.get("cpf", False):
        g.c("pull the kernel's own code into L2 (64 B per lane)")
        g("s_getpc_b64 s[94:95]")
        g.lab("L_pc")
        g(f"s_sub_u32 s94, s94, L_pc-{NAME}_kernel")
        g("s_subb_u32 s95, s95, 0")
        g("v_lshlrev_b32 v30, 6, v0")
        g(f"v_min_u32 v30, L_codeend-{NAME}_kernel-4, v30")
        g("global_load_dword v31, v30, s[94:95]")
    g(f"s_lshr_b32 s{sT0}, s{sWV}, 1")
    g(f"s_and_b32 s{sT1}, s{sWV}, 1")
    g(f"s_lshl_b32 s{sT2}, s{sT0}, 6")
    g("v_and_b32 v3, 15, v2")
    g("v_lshrrev_b32 v8, 4, v2")
    g(f"v_add_u32 v9, s{sT2}, v3")
    for v in range(2):
        if v == 1:
            g("v_add_u32 v9, 1, v9")
        g("v_and_b32 v10, 6, v9")
        g("v_xor_b32 v10, v10, v8")
        g("v_lshlrev_b32 v10, 4, v10")
        g(f"v_lshl_add_u32 v{4+v}, v9, 7, v10")
    g("v_add_u32 v6, 0x4000, v4")
    g(f"s_cmp_eq_u32 s{sQ}, 0")
    g("s_cselect_b64 vcc, -1, 0")
    g(f"v_cndmask_b32 v{vAa[0][0]}, v6, v4, vcc")
    g(f"v_cndmask_b32 v{vAa[1][0]}, v4, v5, vcc")
    g(f"v_cndmask_b32 v{vAa[2][0]}, v5, v6, vcc")
    for p in range(3):
        g(f"v_xor_b32 v{vAa[p][1]}, 64, v{vAa[p][0]}")
    g("v_bfe_u32 v9, v2, 2, 2")
    g("v_lshl_add_u32 v10, v8, 3, v9")
    g("v_lshlrev_b32 v10, 8, v10")
    g("v_and_b32 v11, 3, v2")
    g("v_lshl_add_u32 v10, v11, 3, v10")
    g("v_and_b32 v11, 1, v8")
    g("v_lshl_or_b32 v11, v11, 2, v9")
    g(f"s_lshl_b32 s{sT2}, s{sT1}, 2")
    g(f"v_xor_b32 v11, s{sT2}, v11")
    g("v_lshl_add_u32 v10, v11, 5, v10")
    g(f"v_add_u32 v{vBa[0]}, 0x10000, v10")
    for nt in range(1, 4):
        g(f"v_xor_b32 v{vBa[nt]}, {nt*32}, v{vBa[0]}")
    for i in range(64):
        g(f"v_mov_b32 v{ACC+i}, 0")
    g("s_waitcnt lgkmcnt(0)")
    common_srds()
    gb_loads()
    if stamps:
        g(f"v_mov_b32 v{VS}, s{sTS+4}")
        g(f"buffer_store_dword v{VS}, v{VS+1}, s[{SST}:{SST+3}], 0 offen")

    RORD = ["A0", "B0a", "B0b", "B1a", "B1b", "A1", "B2a", "B2b", "B3a", "B3b", "A2", "A3"]
    MORD = [(0, 0), (0, 1), (1, 0), (1, 1), (0, 2), (0, 3), (1, 2), (1, 3),
            (2, 0), (2, 1), (2, 2), (2, 3), (3, 0), (3, 1), (3, 2), (3, 3)]

    def rd(n, which):
        if opts.get("noread"):
            return
        st = n & 1
        pos, ks = divmod(n % 6, 2)
        if which[0] == "A":
            mt = int(which[1])
            r = FA[st] + 4 * mt
            g(f"ds_read_b128 v[{r}:{r+3}], v{vAa[pos][ks]} offset:{mt*2048}")
        else:
            nt, j = int(which[1]), "ab".index(which[2])
            r = FB[st] + 4 * nt + 2 * j
            g(f"ds_read_b64_tr_b16 v[{r}:{r+1}], v{vBa[nt]} offset:{pos*16384+ks*8192+j*1024}")

    def mf(n, mt, nt):
        if opts.get("nomfma"):
            return
        st = n & 1
        t = T(mt, nt)
        fa, fb = FA[st] + 4 * mt, FB[st] + 4 * nt
        g(f"v_mfma_f32_16x16x32_bf16 v[{t}:{t+3}], v[{fa}:{fa+3}], v[{fb}:{fb+3}], v[{t}:{t+3}]")
        pace = int(opts.get("pace", -1))
        if pace >= 0 and (mt * 4 + nt) % int(opts.get("pacemod", 1)) == 0:
            g(f"s_nop {pace}")

    def tog(regs, val):
        for r in regs:
            g(f"v_xor_b32 v{r}, {val:#x}, v{r}")

    BPOS = int(opts.get("bpos", 4))
    g(f"s_mov_b32 s{sI}, 0")
    g("s_barrier")
    stamp(1)
    for wh in RORD:
        rd(0, wh)
    g.lab("L_loop")
    queue = [(0, wh) for wh in RORD]
    for n in range(6):
        last = (n & 1) == 1
        pending = list(RORD)
        first_rd = BPOS if last else 0
        for i, (mt, nt) in enumerate(MORD):
            needs = {(n, f"A{mt}"), (n, f"B{nt}a"), (n, f"B{nt}b")}
            p_ = max((k for k, t in enumerate(queue) if t in needs), default=-1)
            if p_ >= 0:
                g(f"s_waitcnt lgkmcnt({len(queue) - 1 - p_})")
                del queue[:p_ + 1]
            mf(n, mt, nt)
            if last and i == BPOS - 1:
                if n == 5:
                    tog(vBa, 0xc000)
                g("s_waitcnt lgkmcnt(0)")
                del queue[:]
                g("s_barrier")
            if i >= first_rd - (1 if last else 0) and pending and not (last and i < BPOS - 1):
                k = 1
                rem = 16 - i
                k = -(-len(pending) // rem)
                for _ in range(k):
                    wh = pending.pop(0)
                    rd(n + 1, wh)
                    queue.append(((n + 1) % 6, wh))
            if i == 13 and n in (2, 4, 5):
                tog(vAa[{2: 0, 4: 1, 5: 2}[n]], 0x8000)
        assert not pending
    assert queue == [(0, wh) for wh in RORD][-len(queue):]
    g(f"s_add_u32 s{sI}, s{sI}, 1")
    g(f"s_cmp_lt_u32 s{sI}, 4")
    g("s_cbranch_scc1 L_loop")
    stamp(2)

    g.c("---- statistics")
    g.lab("L_tail")
    g(f"s_lshr_b32 s{sT0}, s{sWV}, 1")
    g(f"s_and_b32 s{sT1}, s{sWV}, 1")
    g(f"s_lshl_b32 s{sT2}, s{sT0}, 6")
    g(f"s_add_u32 s{sT2}, s{sT2}, 48")
    g(f"v_lshl_add_u32 v9, v8, 2, s{sT2}")
    g(f"s_lshl_b32 s{sT2}, s{sT1}, 9")
    g(f"v_lshl_add_u32 v10, v2, 3, s{sT2}")
    g("v_add_u32 v11, 0x10000, v10")
    g("s_waitcnt lgkmcnt(0)")
    for mt in range(4):
        if mt == 3:
            for i in range(1, 4):
                g(f"v_add_u32 v26, {i}, v9")
                g(f"v_cmp_gt_u32 vcc, s{sLIM}, v26")
                g("s_nop 1")
                for nt in range(4):
                    r = T(3, nt) + i
                    g(f"v_cndmask_b32 v{r}, 0, v{r}, vcc")
        for h2 in range(2):
            for nt in range(4):
                sa, qa = 32 + 4 * nt, 34 + 4 * nt
                p = T(mt, nt) + 2 * h2
                if mt == 0 and h2 == 0:
                    g(f"v_pk_mul_f32 v[{qa}:{qa+1}], v[{p}:{p+1}], v[{p}:{p+1}]")
                    continue
                if mt == 0 and h2 == 1:
                    g(f"v_pk_add_f32 v[{sa}:{sa+1}], v[{p-2}:{p-1}], v[{p}:{p+1}]")
                else:
                    g(f"v_pk_add_f32 v[{sa}:{sa+1}], v[{sa}:{sa+1}], v[{p}:{p+1}]")
                g(f"v_pk_fma_f32 v[{qa}:{qa+1}], v[{p}:{p+1}], v[{p}:{p+1}], v[{qa}:{qa+1}]")
    for nt in range(4):
        g(f"v_add_f32 v{48+nt}, v{32+4*nt}, v{33+4*nt}")
        g(f"v_add_f32 v{52+nt}, v{34+4*nt}, v{35+4*nt}")
    g("s_nop 0")
    for bse in (48, 52):
        g(f"v_permlane32_swap_b32 v{bse}, v{bse+2}")
        g(f"v_permlane32_swap_b32 v{bse+1}, v{bse+3}")
    g("s_nop 0")
    for bse in (48, 52):
        g(f"v_add_f32 v{bse}, v{bse}, v{bse+2}")
        g(f"v_add_f32 v{bse+1}, v{bse+1}, v{bse+3}")
    g("s_nop 1")
    for bse in (48, 52):
        g(f"v_permlane16_swap_b32 v{bse}, v{bse+1}")
    g("s_nop 0")
    g("v_add_f32 v53, v52, v53")
    g("v_add_f32 v52, v48, v49")
    g(f"s_cmp_eq_u32 s{sT0}, 0")
    g("s_cbranch_scc1 L_wm0a")
    g("ds_write_b64 v11, v[52:53]")
    g("s_waitcnt lgkmcnt(0)")
    g.lab("L_wm0a")
    g("s_barrier")
    g(f"s_cmp_lg_u32 s{sT0}, 0")
    g("s_cbranch_scc1 L_wm1b")
    g("ds_read_b64 v[54:55], v11")
    g(f"s_lshl_b32 s{sT2}, s{sT}, 10")
    g("v_mov_b32 v56, 0x7fc00000")
    g("s_waitcnt lgkmcnt(0)")
    g("v_pk_add_f32 v[52:53], v[52:53], v[54:55]")
    g("v_cmp_eq_u32 vcc, -1, v52")
    g("s_nop 1")
    g("v_cndmask_b32 v52, v52, v56, vcc")
    g("v_cmp_eq_u32 vcc, -1, v53")
    g("s_nop 1")
    g("v_cndmask_b32 v53, v53, v56, vcc")
    g(f"buffer_store_dwordx2 v[52:53], v10, s[{SG}:{SG+3}], s{sT2} offen sc1")
    g.lab("L_wm1b")
    stamp(3)
    g.c("---- transpose the accumulators through LDS (fp32, column-major, swizzled)")
    g("v_and_b32 v9, 7, v3")
    g("v_lshrrev_b32 v10, 3, v3")
    g("v_lshlrev_b32 v10, 2, v10")
    g("v_xor_b32 v9, v9, v10")
    g("v_xor_b32 v9, v9, v8")
    g("v_lshlrev_b32 v9, 4, v9")
    g("v_lshl_add_u32 v9, v3, 8, v9")
    g(f"s_lshl_b32 s{sT2}, s{sWV}, 14")
    g(f"v_add_u32 v9, s{sT2}, v9")
    for mt in range(4):
        for par in range(2):
            x = ((4 * mt) ^ (8 * par)) * 16
            if x:
                g(f"v_xor_b32 v10, {x}, v9")
                a = 10
            else:
                a = 9
            for nt in (par, par + 2):
                r = T(mt, nt)
                g(f"ds_write_b128 v{a}, v[{r}:{r+3}] offset:{nt*4096}")
    g.L.append("@@SEC loader")

    g(f"s_sub_u32 s{sT3}, s{sWV}, 4")
    g("v_lshrrev_b32 v3, 3, v2")
    g(f"s_lshl_b32 s{sT0}, s{sT3}, 5")
    g(f"v_add_u32 v3, s{sT0}, v3")
    g("v_lshlrev_b32 v3, 10, v3")
    g("v_lshrrev_b32 v4, 4, v2")
    g("v_bfe_u32 v5, v2, 4, 2")
    g("v_lshlrev_b32 v5, 1, v5")
    g("v_and_b32 v6, 7, v2")
    g("v_xor_b32 v5, v5, v6")
    g("v_lshl_add_u32 v16, v5, 4, v3")
    for j in range(1, 4):
        g(f"v_add_u32 v{16+j}, {j*(8192-1024)}, v16")
    g(f"s_lshl_b32 s{sT0}, s{sT3}, 4")
    g(f"v_add_u32 v3, s{sT0}, v4")
    g("v_lshlrev_b32 v3, 9, v3")
    g("v_lshlrev_b32 v5, 1, v4")
    g("v_and_b32 v6, 15, v2")
    g("v_xor_b32 v5, v5, v6")
    g("v_lshl_add_u32 v3, v5, 4, v3")
    g(f"s_lshl_b32 s{sT0}, s{sQ}, 8")
    g(f"v_add_u32 v20, s{sT0}, v3")
    g("v_add_u32 v21, 1024, v20")
    g("v_xor_b32 v22, 128, v20")
    g("v_add_u32 v23, 3072, v22")
    g("v_add_u32 v22, 2048, v22")
    sLX, sLW, sXc, sWc, sRot = 67, 86, 87, 88, 89
    sPC, sPH, sGC, sGH = 90, 91, 92, 93
    sTP = [68, 69, 70]
    g(f"s_lshl_b32 s{sLX}, s{sT3}, 12")
    g(f"s_add_u32 s{sLW}, s{sLX}, 0x10000")
    g(f"s_lshl_b32 s{sPC}, s{sQ}, 14")
    g(f"s_xor_b32 s{sPH}, s{sPC}, 0x4000")
    g(f"s_lshl_b32 s{sGC}, s{sQ}, 9")
    g(f"s_xor_b32 s{sGH}, s{sGC}, 0x200")
    g(f"s_cmp_eq_u32 s{sQ}, 0")
    for p in range(3):
        g(f"s_cselect_b32 s{sTP[p]}, {TAPS[0][p]*131072}, {TAPS[1][p]*131072}" if TAPS[0][p] * TAPS[1][p] == 0 else
          f"s_cselect_b32 s{sTP[p]}, 1, 2")
    g(f"s_lshl_b32 s{sTP[2]}, s{sTP[2]}, 17")
    g(f"s_lshr_b32 s{sRot}, s{sR}, 1")
    g(f"s_mov_b32 s{sI}, 0")
    if stamps:
        g("s_memrealtime s[72:73]")
    g("s_waitcnt lgkmcnt(0)")
    if stamps:
        g("s_memrealtime s[74:75]")
    srd(SX, 4, 5, 16384000)
    srd(SW, 6, 7, 393216)

    def issue(kind):
        if opts.get("noload"):
            return
        if kind in "CH":
            p = pol(xcpol if kind == "C" else xhpol)
            g(f"s_add_u32 m0, s{sLX}, s{sPC if kind == 'C' else sPH}")
            g(f"s_add_u32 s{sT0}, s{sXc}, s{sGC if kind == 'C' else sGH}")
            for j in range(4):
                g(f"buffer_load_dwordx4 v{16+j}, s[{SX}:{SX+3}], s{sT0} offen offset:{j*1024}{p} lds")
        else:
            pos = int(kind)
            g(f"s_add_u32 m0, s{sLW}, {pos*16384}")
            g(f"s_add_u32 s{sT0}, s{sWc}, s{sTP[pos]}")
            for j in range(4):
                g(f"buffer_load_dwordx4 v{20+j}, s[{SW}:{SW+3}], s{sT0} offen offset:{j*1024} lds")

    W_ = 63 if opts.get("noload") else 12
    g.lab("L_lloop")
    g(f"s_add_u32 s{sT1}, s{sRot}, s{sI}")
    g(f"s_and_b32 s{sT1}, s{sT1}, 3")
    g(f"s_lshl_b32 s{sWc}, s{sT1}, 15")
    g(f"s_lshl_b32 s{sT1}, s{sT1}, 7")
    g(f"s_add_u32 s{sXc}, s{sXB}, s{sT1}")
    issue("C")
    issue("0")
    g(f"s_cmp_eq_u32 s{sI}, 0")
    g("s_cbranch_scc1 L_ls1")
    g(f"s_waitcnt vmcnt({W_})")
    g("s_barrier")
    g.lab("L_ls1")
    issue("H")
    g(f"s_cmp_eq_u32 s{sI}, 0")
    g("s_cbranch_scc1 L_ls2")
    g(f"s_waitcnt vmcnt({W_})")
    g("s_barrier")
    g.lab("L_ls2")
    issue("1")
    issue("2")
    g(f"s_xor_b32 s{sLX}, s{sLX}, 0x8000")
    g(f"s_xor_b32 s{sLW}, s{sLW}, 0xc000")
    g(f"s_add_u32 s{sI}, s{sI}, 1")
    g(f"s_cmp_lt_u32 s{sI}, 4")
    g(f"s_waitcnt vmcnt({W_})")
    g("s_barrier")
    g("s_cbranch_scc1 L_lloop")
    common_srds()
    if stamps:
        g(f"v_mov_b32 v{VS}, s74")
        g(f"buffer_store_dword v{VS}, v{VS+1}, s[{SST}:{SST+3}], 0 offen")
        g(f"v_mov_b32 v{VS}, s72")
        g(f"buffer_store_dword v{VS}, v{VS+1}, s[{SST}:{SST+3}], 0 offen offset:12")
    gb_loads()
    g(f"s_lshl_b32 s{sT0}, s{sGRP}, 6")
    g(f"v_mov_b32 v24, s{sT0}")
    g(f"buffer_load_dword v5, v24, s[{SD}:{SD+3}], 0 offen sc1")
    g("s_waitcnt vmcnt(7)")
    g("s_barrier")
    g("s_waitcnt vmcnt(3)")
    stamp(1)
    g("s_barrier")
    g.lab("L_ljoin")
    g("s_barrier")
    g.c("wait until every workgroup of the group has armed its slot")
    g(f"s_mov_b32 s{sSPIN}, 0")
    g(f"s_waitcnt vmcnt({1 if (opts.get('tpf', False) and not stamps) else 0})")
    g.lab("L_flagpoll")
    g("v_cmp_eq_u32 vcc, 0, v5")
    g(f"s_add_u32 s{sSPIN}, s{sSPIN}, 1")
    g(f"s_cmp_ge_u32 s{sSPIN}, {SPINMAX}")
    g("s_cbranch_scc1 L_noflagwait")
    g("s_cbranch_vccz L_noflagwait")
    g("s_sleep 16")
    g(f"buffer_load_dword v5, v24, s[{SD}:{SD+3}], 0 offen sc1")
    g("s_waitcnt vmcnt(0)")
    g("s_branch L_flagpoll")
    g.lab("L_noflagwait")
    stamp(2)
    g("s_barrier")

    g("s_branch L_join")
    g.L.append("@@SEC join")
    g.lab("L_join")
    GV = 96
    g("v_and_b32 v4, 7, v2")
    g("v_lshrrev_b32 v3, 3, v2")
    g(f"s_lshl_b32 s{sT0}, s{sWV}, 7")
    g(f"v_lshl_add_u32 v7, v4, 4, s{sT0}")
    g("v_lshl_add_u32 v12, v3, 10, v7")
    g("v_add_u32 v11, 0x14000, v7")
    g("s_waitcnt lgkmcnt(0)")
    g("s_barrier")
    g(f"s_mov_b32 s{sSPIN}, 0")

    def gfirst():
        for k in range(8):
            g(f"s_mov_b32 s{sT1}, {k*8192}")
            g(f"buffer_load_dwordx4 v[{GV+4*k}:{GV+4*k+3}], v12, s[{SG}:{SG+3}], s{sT1} offen{pol(gpol)}")
    gpol = opts.get("gpol", "sc1")
    if not opts.get("glate"):
        gfirst()
    g(f"s_and_b32 s{sT0}, s{sWV}, 3")
    g(f"s_lshr_b32 s{sT1}, s{sWV}, 2")
    g(f"s_lshl_b32 s{sT2}, s{sT1}, 3")
    g(f"v_add_u32 v3, s{sT2}, v3")
    g("v_and_b32 v5, 3, v2")
    g("v_lshlrev_b32 v5, 2, v5")
    g("v_xor_b32 v5, v5, v3")
    g("v_lshlrev_b32 v5, 4, v5")
    g("v_lshl_add_u32 v5, v4, 11, v5")
    g(f"s_lshl_b32 s{sT2}, s{sT0}, 14")
    g(f"v_add_u32 v5, s{sT2}, v5")
    D = 64
    for e in range(8):
        if e:
            g(f"v_xor_b32 v6, {e*16}, v5")
            a = 6
        else:
            a = 5
        g(f"ds_read_b128 v[{D+4*e}:{D+4*e+3}], v{a} offset:{e*256}")
    g(f"s_lshr_b32 s{sT2}, s{sT0}, 1")
    g(f"s_lshl_b32 s{sT2}, s{sT2}, 6")
    g(f"v_lshl_add_u32 v6, v3, 2, s{sT2}")
    g(f"s_and_b32 s{sT2}, s{sT0}, 1")
    g(f"s_lshl_b32 s{sT3}, s{sT2}, 7")
    g(f"v_lshl_add_u32 v7, v4, 4, s{sT3}")
    g("v_mov_b32 v9, 0x40000000")
    for rho in range(4):
        g(f"v_add_u32 v8, {rho}, v6")
        g(f"v_cmp_gt_u32 vcc, s{sLIM}, v8")
        g(f"v_lshl_add_u32 v{13+rho}, v8, 9, v7")
        g("s_nop 0")
        g(f"v_cndmask_b32 v{13+rho}, v9, v{13+rho}, vcc")
    g(f"s_lshl_b32 s{sT3}, s{sT2}, 9")
    g(f"s_add_u32 s{sT3}, s{sT3}, 0x14000")
    g(f"v_lshl_add_u32 v17, v4, 6, s{sT3}")
    c0 = -2.0 * 1.4426950408889634 * 0.7978845608028654
    c1 = c0 * 0.044715
    g(f"v_mov_b32 v28, {f32bits(c1):#x}")
    g(f"v_mov_b32 v29, {f32bits(c0):#x}")
    if opts.get("glate"):
        if int(opts.get("gdelay", 0)):
            g(f"s_sleep {int(opts.get('gdelay', 0))}")
        gfirst()
    g.lab("L_gpoll")
    g(f"s_mov_b32 s{sMASK}, 0")
    g("s_waitcnt vmcnt(0)")
    for k in range(8):
        b = GV + 4 * k
        g(f"v_max3_u32 v3, v{b}, v{b+1}, v{b+2}")
        g(f"v_max_u32 v3, v3, v{b+3}")
        g("v_cmp_eq_u32 vcc, -1, v3")
        g("s_cmp_lg_u64 vcc, 0")
        g(f"s_cselect_b32 s{sT0}, {1<<k}, 0")
        g(f"s_or_b32 s{sMASK}, s{sMASK}, s{sT0}")
    g("s_cbranch_scc0 L_gdone")
    g(f"s_add_u32 s{sSPIN}, s{sSPIN}, 1")
    g(f"s_cmp_ge_u32 s{sSPIN}, {SPINMAX}")
    g("s_cbranch_scc1 L_gdone")
    if int(opts.get("gsleep", 0)):
        g(f"s_sleep {int(opts.get('gsleep', 0))}")
    for k in range(8):
        g(f"s_bitcmp1_b32 s{sMASK}, {k}")
        g(f"s_cbranch_scc0 L_gskip{k}")
        g(f"s_mov_b32 s{sT1}, {k*8192}")
        g(f"buffer_load_dwordx4 v[{GV+4*k}:{GV+4*k+3}], v12, s[{SG}:{SG+3}], s{sT1} offen{pol(opts.get('gpol2', gpol))}")
        g.lab(f"L_gskip{k}")
    g("s_branch L_gpoll")
    g.lab("L_gdone")
    stamp(4)
    for step in (16, 8, 4):
        for a in range(GV, GV + step, 2):
            g(f"v_pk_add_f32 v[{a}:{a+1}], v[{a}:{a+1}], v[{a+step}:{a+step+1}]")
    g(f"s_mov_b32 s{sT0}, {f32bits(1.0/7999.0):#x}")
    g(f"s_mov_b32 s{sT1}, {f32bits(1e-5):#x}")
    for i in range(4):
        g(f"v_add_f32_dpp v{GV+4+i}, v{GV+i}, v{GV+i} row_ror:8 row_mask:0xf bank_mask:0xf")
    g("v_lshlrev_b32 v18, 16, v30")
    g("v_and_b32 v19, 0xffff0000, v30")
    for i in range(4):
        g(f"v_mov_b32 v{GV+i}, v{GV+4+i}")
    g("v_lshlrev_b32 v20, 16, v31")
    g("v_and_b32 v21, 0xffff0000, v31")
    for i in range(4):
        g(f"v_permlane16_swap_b32 v{GV+i}, v{GV+4+i}")
    g("s_nop 0")
    for a in (0, 2):
        g(f"v_pk_add_f32 v[{GV+a}:{GV+a+1}], v[{GV+a}:{GV+a+1}], v[{GV+4+a}:{GV+5+a}]")
    for i in range(4):
        g(f"v_mov_b32 v{GV+4+i}, v{GV+i}")
    g("s_nop 1")
    for i in range(4):
        g(f"v_permlane32_swap_b32 v{GV+i}, v{GV+4+i}")
    g("s_nop 0")
    for a in (0, 2):
        g(f"v_pk_add_f32 v[{GV+a}:{GV+a+1}], v[{GV+a}:{GV+a+1}], v[{GV+4+a}:{GV+5+a}]")
    for cidx in range(2):
        S, Q = GV + 2 * cidx, GV + 2 * cidx + 1
        g(f"v_mul_f32 v{S}, s{sT0}, v{S}")
        g(f"v_mul_f32 v{Q}, s{sT0}, v{Q}")
        g(f"v_fma_f32 v{Q}, -v{S}, v{S}, v{Q}")
        g(f"v_max_f32 v{Q}, 0, v{Q}")
        g(f"v_add_f32 v{Q}, s{sT1}, v{Q}")
        g(f"v_rsq_f32 v{Q}, v{Q}")
        g("s_nop 0")
        g(f"v_mul_f32 v{22+2*cidx}, v{18+cidx}, v{Q}")
        g(f"v_fma_f32 v{23+2*cidx}, -v{S}, v{22+2*cidx}, v{20+cidx}")
    g("s_mov_b64 exec, 0xff")
    g("ds_write_b128 v11, v[22:25]")
    g("s_mov_b64 exec, -1")
    P = 32
    g("s_waitcnt lgkmcnt(0)")
    g("s_barrier")
    for k in range(4):
        g(f"ds_read_b128 v[{P+4*k}:{P+4*k+3}], v17 offset:{k*16}")
    g("s_waitcnt lgkmcnt(0)")
    stamp(5)
    BC = "op_sel:[0,0,1] op_sel_hi:[1,0,1]"
    U = 96
    for rp in range(2):
        for e in range(8):
            d = D + 4 * e + 2 * rp
            g(f"v_pk_fma_f32 v[{d}:{d+1}], v[{d}:{d+1}], v[{P+2*e}:{P+2*e+1}], v[{P+2*e}:{P+2*e+1}] {BC}")
        for e in range(8):
            d = D + 4 * e + 2 * rp
            u = U + 2 * e
            g(f"v_pk_mul_f32 v[{u}:{u+1}], v[{d}:{d+1}], v[{d}:{d+1}]")
        for e in range(8):
            u = U + 2 * e
            g(f"v_pk_fma_f32 v[{u}:{u+1}], v[{u}:{u+1}], v[28:29], v[28:29] {BC}")
        for e in range(8):
            d = D + 4 * e + 2 * rp
            u = U + 2 * e
            g(f"v_pk_mul_f32 v[{u}:{u+1}], v[{u}:{u+1}], v[{d}:{d+1}]")
        for e in range(16):
            g(f"v_exp_f32 v{U+e}, v{U+e}")
        for e in range(8):
            u = U + 2 * e
            g(f"v_pk_add_f32 v[{u}:{u+1}], v[{u}:{u+1}], 1.0 op_sel_hi:[1,0]")
        for e in range(16):
            g(f"v_rcp_f32 v{U+e}, v{U+e}")
        for e in range(8):
            d = D + 4 * e + 2 * rp
            u = U + 2 * e
            g(f"v_pk_mul_f32 v[{d}:{d+1}], v[{u}:{u+1}], v[{d}:{d+1}]")
        for r2 in range(2):
            rho = 2 * rp + r2
            O = 112 + 4 * rho
            for k in range(4):
                g(f"v_cvt_pk_bf16_f32 v{O+k}, v{D+4*(2*k)+rho}, v{D+4*(2*k+1)+rho}")
            g(f"buffer_store_dwordx4 v[{O}:{O+3}], v{13+rho}, s[{SO}:{SO+3}], s{sOB} offen{pol(opol)}")
    if stamps:
        g("s_waitcnt vmcnt(0)")
        stamp(6)
    if opts.get("dbgt"):
        g("s_waitcnt vmcnt(0)")
        g("s_memrealtime s[80:81]")
        g("s_memtime s[82:83]")
        g("s_waitcnt lgkmcnt(0)")
        g("s_and_b32 s84, s2, 0xf9")
        g("s_cmp_lg_u32 s84, 0")
        g("s_cbranch_scc1 L_end")
        g(f"s_cmp_lg_u32 s{sWV}, 4")
        g("s_cbranch_scc1 L_end")
        g("s_sub_u32 s80, s80, s76")
        g("s_sub_u32 s82, s82, s78")
        g("v_mov_b32 v4, s80")
        g("v_mov_b32 v5, s82")
        g("s_lshl_b32 s84, s2, 2")
        g("s_add_u32 s84, s84, 8")
        g("v_mov_b32 v6, s84")
        g("s_mov_b64 exec, 1")
        g(f"buffer_store_dwordx2 v[4:5], v6, s[{SD}:{SD+3}], 0 offen")
    g.lab("L_end")
    g("s_endpgm")
    g.c("---- the four workgroups without a tile arm the slots of one group each")
    g.lab("L_armer")
    g(f"s_lshl_b32 s{sGRP}, s{sPI}, 1")
    g(f"s_add_u32 s{sGRP}, s{sGRP}, s{sQ}")
    g("v_lshlrev_b32 v3, 4, v0")
    for i in range(4, 8):
        g(f"v_mov_b32 v{i}, -1")
    g("s_waitcnt lgkmcnt(0)")
    srd(SD, 14, 15, 256)
    g(f"s_lshl_b32 s{sT0}, s{sGRP}, 16")
    g(f"s_add_u32 s{SG}, s16, s{sT0}")
    g(f"s_addc_u32 s{SG+1}, s17, 0")
    g(f"s_and_b32 s{SG+1}, s{SG+1}, 0xffff")
    g(f"s_mov_b32 s{SG+2}, {63*1024}")
    g(f"s_mov_b32 s{SG+3}, 0x00020000")
    for k in range(8):
        g(f"s_mov_b32 s{sT1}, {k*8192}")
        g(f"buffer_store_dwordx4 v[4:7], v3, s[{SG}:{SG+3}], s{sT1} offen sc1")
    g("s_waitcnt vmcnt(0)")
    g("s_barrier")
    g("v_cmp_eq_u32 vcc, 0, v0")
    g(f"s_lshl_b32 s{sT0}, s{sGRP}, 6")
    g(f"v_mov_b32 v8, s{sT0}")
    g("v_mov_b32 v9, 1")
    g("s_and_saveexec_b64 s[4:5], vcc")
    g("s_cbranch_execz L_armend")
    g(f"buffer_store_dword v9, v8, s[{SD}:{SD+3}], 0 offen sc1")
    g.lab("L_armend")
    g("s_endpgm")

    out = HEADER + """;
; Strided conv (K=3, s=2) as a GEMM (M=2*7999, N=256, K=768) + per-(batch,channel) normalisation + GELU, one launch.
;  * 252 workgroups own a tile of 127 output rows x 128 channels; waves 0-3 run 16x16x32 bf16 MFMAs out of LDS,
;    waves 4-7 stream x (even/odd row planes) and w into LDS with LDS-DMA, one s_barrier per 64-channel tap stage.
;  * every tile publishes its column sums / sums of squares (fp32) in d_ws; 4 helper workgroups first fill those
;    slots with a sentinel and raise a flag in d_debug, so readers can tell this launch's records from old data.
;  * accumulators are transposed through LDS while the records travel; then scale/shift, GELU(tanh), bf16 stores.
; Generated by gen11.py (own generator script).
"""
    out += "; @launch grid=(256,1,1) block=(512,1,1) lds=163840\n"
    out += '.amdgcn_target "amdgcn-amd-amdhsa--gfx950"\n.text\n'
    out += f".globl {NAME}_kernel\n.p2align 8\n.type {NAME}_kernel,@function\n{NAME}_kernel:\n"
    secs = {"head": []}
    cur = "head"
    for ln in g.L:
        if ln.startswith("@@SEC "):
            cur = ln[6:]
            secs[cur] = []
        else:
            secs[cur].append(ln)
    order = ["head", "loader", "compute", "join"]
    out += "\n".join(ln for k in order for ln in secs[k]) + "\nL_codeend:\n"
    nv = 168 if stamps else 160
    out += f""".section .rodata,"a"
.p2align 6
.amdhsa_kernel {NAME}_kernel
  .amdhsa_next_free_vgpr {nv}
  .amdhsa_next_free_sgpr 96
  .amdhsa_accum_offset {nv}
  .amdhsa_group_segment_fixed_size 0
  .amdhsa_kernarg_size 56
  .amdhsa_user_sgpr_count 2
  .amdhsa_user_sgpr_kernarg_segment_ptr 1
  .amdhsa_system_sgpr_workgroup_id_x 1
  .amdhsa_float_denorm_mode_32 3
.end_amdhsa_kernel
"""
    return out


if __name__ == "__main__":
    opts = {}
    outp = f"cdna_kernels/{NAME}.s"
    for a in sys.argv[1:]:
        if a.startswith("-o="):
            outp = a[3:]
        else:
            k, _, v = a.partition("=")
            if v in ("0", "1") and k not in ("R", "gsleep", "bpos", "pace", "pacemod", "gdelay"):
                v = bool(int(v))
            opts[k] = v
    open(outp, "w").write(build(opts))
    print("wrote", outp)
```

```python
import sys
import struct

NAME = "standalone__self_sup_conv_stem_wavlm__speech"

HEADER = """; Kernarg layout for this problem (56 bytes, ptrs only, base s[0:1]):
;   offset  48: d_ws      268435456 bytes workspace
"""


def f32bits(x):
    return struct.unpack("<I", struct.pack("<f", x))[0]


class Gen:
    def __init__(self, opts):
        self.o = opts
        self.L = []

    def __call__(self, s):
        self.L.append("    " + s)

    def lab(self, s):
        self.L.append(s + ":")

    def c(self, s):
        self.L.append("    ; " + s)


TAPS = {0: [0, 2, 1], 1: [1, 0, 2]}
XNEED = {0: ["C", "C", "H"], 1: ["C", "H", "H"]}


def build(opts):
    g = Gen(opts)
    xcpol = opts.get("xcpol", "")
    xhpol = opts.get("xhpol", "")
    opol = opts.get("opol", "nt")
    stamps = opts.get("stamps", False)
    R = int(opts.get("R", 3))
    SPINMAX = "0x40000"
    streams = opts.get("streams", "C01H2,C0H12").split(",")
    pol = lambda p: (" " + p.replace("+", " ")) if p else ""

    SX, SW, SO, SG, SD, SGA, SBE = 20, 24, 28, 32, 36, 40, 44
    sXCD, sR, sQ, sPI, sB, sT, sWV = 50, 51, 52, 53, 54, 55, 56
    sXB, sOB, sLIM, sGRP = 57, 58, 59, 60
    sI, sT0, sT1, sT2, sT3 = 61, 62, 63, 64, 65
    sFI = 66
    sLB = 67
    sMASK, sNEW = 68, 69
    sSPIN = 72
    sXC, sWC = 86, 90
    SST = 76
    sTS = 80
    VS = 160

    def srd(base, lo, hi, nbytes):
        g(f"s_mov_b32 s{base}, s{lo}")
        g(f"s_and_b32 s{base+1}, s{hi}, 0xffff")
        g(f"s_mov_b32 s{base+2}, {nbytes}")
        g(f"s_mov_b32 s{base+3}, 0x00020000")

    def stamp(slot):
        if not stamps:
            return
        g(f"s_memrealtime s[{sTS}:{sTS+1}]")
        if slot in (1, 2):
            g(f"s_memtime s[{sTS+2}:{sTS+3}]")
        g("s_waitcnt lgkmcnt(0)")
        g(f"v_mov_b32 v{VS}, s{sTS}")
        g(f"buffer_store_dword v{VS}, v{VS+1}, s[{SST}:{SST+3}], 0 offen offset:{slot*4}")
        if slot in (1, 2):
            g(f"v_mov_b32 v{VS}, s{sTS+2}")
            g(f"buffer_store_dword v{VS}, v{VS+1}, s[{SST}:{SST+3}], 0 offen offset:{(slot+7)*4}")

    if stamps:
        g(f"s_memrealtime s[{sTS+4}:{sTS+5}]")
    if opts.get("dbgt"):
        g("s_memrealtime s[76:77]")
        g("s_memtime s[78:79]")
    g("s_cmp_ge_u32 s2, 256")
    g("s_cbranch_scc1 L_end")
    g("s_load_dwordx8 s[4:11], s[0:1], 0")
    g("s_load_dwordx4 s[12:15], s[0:1], 32")
    g("s_load_dwordx2 s[16:17], s[0:1], 48")
    g(f"s_and_b32 s{sXCD}, s2, 7")
    g(f"s_lshr_b32 s{sR}, s2, 3")
    g(f"s_and_b32 s{sQ}, s{sR}, 1")
    g(f"s_lshr_b32 s{sPI}, s{sR}, 1")
    g(f"s_lshl_b32 s{sPI}, s{sPI}, 3")
    g(f"s_add_u32 s{sPI}, s{sPI}, s{sXCD}")
    g(f"s_cmp_lt_u32 s{sPI}, 2")
    g("s_cbranch_scc1 L_armer")
    g(f"s_sub_u32 s{sPI}, s{sPI}, 2")
    g(f"s_cmp_ge_u32 s{sPI}, 63")
    g(f"s_cselect_b32 s{sB}, 1, 0")
    g(f"s_mul_i32 s{sT}, s{sB}, 63")
    g(f"s_sub_u32 s{sT}, s{sPI}, s{sT}")
    g("v_lshrrev_b32 v1, 6, v0")
    g("v_and_b32 v2, 63, v0")
    g(f"v_readfirstlane_b32 s{sWV}, v1")
    g(f"s_mul_i32 s{sXB}, s{sB}, 16000")
    g(f"s_mul_i32 s{sT0}, s{sT}, 254")
    g(f"s_add_u32 s{sXB}, s{sXB}, s{sT0}")
    g(f"s_lshl_b32 s{sXB}, s{sXB}, 9")
    g(f"s_mul_i32 s{sOB}, s{sB}, 7999")
    g(f"s_mul_i32 s{sT0}, s{sT}, 127")
    g(f"s_add_u32 s{sOB}, s{sOB}, s{sT0}")
    g(f"s_lshl_b32 s{sOB}, s{sOB}, 9")
    g(f"s_lshl_b32 s{sT1}, s{sQ}, 8")
    g(f"s_add_u32 s{sOB}, s{sOB}, s{sT1}")
    g(f"s_sub_u32 s{sLIM}, 7999, s{sT0}")
    g(f"s_min_u32 s{sLIM}, s{sLIM}, 127")
    g(f"s_lshl_b32 s{sGRP}, s{sB}, 1")
    g(f"s_add_u32 s{sGRP}, s{sGRP}, s{sQ}")
    g(f"s_cmp_lt_u32 s{sWV}, 4")
    g("s_cbranch_scc1 L_compute")
    g.L.append("@@SEC compute")
    g.lab("L_compute")

    def common_srds():
        srd(SGA, 8, 9, 512)
        srd(SBE, 10, 11, 512)
        srd(SO, 12, 13, 8190976)
        srd(SD, 14, 15, 256)
        g(f"s_lshl_b32 s{sT0}, s{sGRP}, 16")
        g(f"s_add_u32 s{SG}, s16, s{sT0}")
        g(f"s_addc_u32 s{SG+1}, s17, 0")
        g(f"s_and_b32 s{SG+1}, s{SG+1}, 0xffff")
        g(f"s_mov_b32 s{SG+2}, {63*1024}")
        g(f"s_mov_b32 s{SG+3}, 0x00020000")
        if stamps:
            g(f"s_add_u32 s{SST}, s16, 0x100000")
            g(f"s_addc_u32 s{SST+1}, s17, 0")
            g(f"s_and_b32 s{SST+1}, s{SST+1}, 0xffff")
            g(f"s_mov_b32 s{SST+2}, 0x10000")
            g(f"s_mov_b32 s{SST+3}, 0x00020000")
            g(f"s_lshl_b32 s{sT0}, s2, 8")
            g(f"s_lshr_b32 s{sT1}, s{sWV}, 2")
            g(f"s_lshl_b32 s{sT1}, s{sT1}, 7")
            g(f"s_add_u32 s{sT0}, s{sT0}, s{sT1}")
            g(f"v_mov_b32 v{VS+1}, s{sT0}")
            g(f"v_and_b32 v{VS}, 0xff, v0")
            g(f"v_cmp_ne_u32 vcc, 0, v{VS}")
            g(f"v_mov_b32 v{VS}, 0x40000000")
            g("s_nop 1")
            g(f"v_cndmask_b32 v{VS+1}, v{VS+1}, v{VS}, vcc")

    def gb_loads():
        g("v_and_b32 v29, 7, v2")
        g(f"s_lshl_b32 s{sT0}, s{sWV}, 5")
        g(f"v_lshl_add_u32 v29, v29, 2, s{sT0}")
        g(f"s_lshl_b32 s{sT0}, s{sQ}, 8")
        g(f"buffer_load_dword v30, v29, s[{SGA}:{SGA+3}], s{sT0} offen")
        g(f"buffer_load_dword v31, v29, s[{SBE}:{SBE+3}], s{sT0} offen")

    vAa = [[12 + p * 2 + ks for ks in range(2)] for p in range(3)]
    vBa = [20, 21, 22, 23]
    FA = [32, 128]
    FB = [48, 144]
    ACC = 64

    def T(mt, nt):
        return ACC + (mt * 4 + nt) * 4

    g.c("---- compute wave setup")
    if opts.get("prio", False):
        g("s_setprio 3")
    if opts.get("cpf", False):
        g.c("pull the kernel's own code into L2 (64 B per lane)")
        g("s_getpc_b64 s[94:95]")
        g.lab("L_pc")
        g(f"s_sub_u32 s94, s94, L_pc-{NAME}_kernel")
        g("s_subb_u32 s95, s95, 0")
        g("v_lshlrev_b32 v30, 6, v0")
        g(f"v_min_u32 v30, L_codeend-{NAME}_kernel-4, v30")
        g("global_load_dword v31, v30, s[94:95]")
    g(f"s_lshr_b32 s{sT0}, s{sWV}, 1")
    g(f"s_and_b32 s{sT1}, s{sWV}, 1")
    g(f"s_lshl_b32 s{sT2}, s{sT0}, 6")
    g("v_and_b32 v3, 15, v2")
    g("v_lshrrev_b32 v8, 4, v2")
    g(f"v_add_u32 v9, s{sT2}, v3")
    for v in range(2):
        if v == 1:
            g("v_add_u32 v9, 1, v9")
        g("v_and_b32 v10, 6, v9")
        g("v_xor_b32 v10, v10, v8")
        g("v_lshlrev_b32 v10, 4, v10")
        g(f"v_lshl_add_u32 v{4+v}, v9, 7, v10")
    g("v_add_u32 v6, 0x4000, v4")
    g(f"s_cmp_eq_u32 s{sQ}, 0")
    g("s_cselect_b64 vcc, -1, 0")
    g(f"v_cndmask_b32 v{vAa[0][0]}, v6, v4, vcc")
    g(f"v_cndmask_b32 v{vAa[1][0]}, v4, v5, vcc")
    g(f"v_cndmask_b32 v{vAa[2][0]}, v5, v6, vcc")
    for p in range(3):
        g(f"v_xor_b32 v{vAa[p][1]}, 64, v{vAa[p][0]}")
    g("v_bfe_u32 v9, v2, 2, 2")
    g("v_lshl_add_u32 v10, v8, 3, v9")
    g("v_lshlrev_b32 v10, 8, v10")
    g("v_and_b32 v11, 3, v2")
    g("v_lshl_add_u32 v10, v11, 3, v10")
    g("v_and_b32 v11, 1, v8")
    g("v_lshl_or_b32 v11, v11, 2, v9")
    g(f"s_lshl_b32 s{sT2}, s{sT1}, 2")
    g(f"v_xor_b32 v11, s{sT2}, v11")
    g("v_lshl_add_u32 v10, v11, 5, v10")
    g(f"v_add_u32 v{vBa[0]}, 0x10000, v10")
    for nt in range(1, 4):
        g(f"v_xor_b32 v{vBa[nt]}, {nt*32}, v{vBa[0]}")
    for i in range(64):
        g(f"v_mov_b32 v{ACC+i}, 0")
    g("s_waitcnt lgkmcnt(0)")
    common_srds()
    gb_loads()
    if stamps:
        g(f"v_mov_b32 v{VS}, s{sTS+4}")
        g(f"buffer_store_dword v{VS}, v{VS+1}, s[{SST}:{SST+3}], 0 offen")

    RORD = ["A0", "B0a", "B0b", "B1a", "B1b", "A1", "B2a", "B2b", "B3a", "B3b", "A2", "A3"]
    MORD = [(0, 0), (0, 1), (1, 0), (1, 1), (0, 2), (0, 3), (1, 2), (1, 3),
            (2, 0), (2, 1), (2, 2), (2, 3), (3, 0), (3, 1), (3, 2), (3, 3)]

    def rd(n, which):
        if opts.get("noread"):
            return
        st = n & 1
        pos, ks = divmod(n % 6, 2)
        if which[0] == "A":
            mt = int(which[1])
            r = FA[st] + 4 * mt
            g(f"ds_read_b128 v[{r}:{r+3}], v{vAa[pos][ks]} offset:{mt*2048}")
        else:
            nt, j = int(which[1]), "ab".index(which[2])
            r = FB[st] + 4 * nt + 2 * j
            g(f"ds_read_b64_tr_b16 v[{r}:{r+1}], v{vBa[nt]} offset:{pos*16384+ks*8192+j*1024}")

    def mf(n, mt, nt):
        if opts.get("nomfma"):
            return
        st = n & 1
        t = T(mt, nt)
        fa, fb = FA[st] + 4 * mt, FB[st] + 4 * nt
        g(f"v_mfma_f32_16x16x32_bf16 v[{t}:{t+3}], v[{fa}:{fa+3}], v[{fb}:{fb+3}], v[{t}:{t+3}]")
        pace = int(opts.get("pace", -1))
        if pace >= 0 and (mt * 4 + nt) % int(opts.get("pacemod", 1)) == 0:
            g(f"s_nop {pace}")

    def tog(regs, val):
        for r in regs:
            g(f"v_xor_b32 v{r}, {val:#x}, v{r}")

    BPOS = int(opts.get("bpos", 4))
    g(f"s_mov_b32 s{sI}, 0")
    g("s_barrier")
    stamp(1)
    for wh in RORD:
        rd(0, wh)
    g.lab("L_loop")
    queue = [(0, wh) for wh in RORD]
    for n in range(6):
        last = (n & 1) == 1
        pending = list(RORD)
        first_rd = BPOS if last else 0
        for i, (mt, nt) in enumerate(MORD):
            needs = {(n, f"A{mt}"), (n, f"B{nt}a"), (n, f"B{nt}b")}
            p_ = max((k for k, t in enumerate(queue) if t in needs), default=-1)
            if p_ >= 0:
                g(f"s_waitcnt lgkmcnt({len(queue) - 1 - p_})")
                del queue[:p_ + 1]
            mf(n, mt, nt)
            if last and i == BPOS - 1:
                if n == 5:
                    tog(vBa, 0xc000)
                g("s_waitcnt lgkmcnt(0)")
                del queue[:]
                g("s_barrier")
            if i >= first_rd - (1 if last else 0) and pending and not (last and i < BPOS - 1):
                k = 1
                rem = 16 - i
                k = -(-len(pending) // rem)
                for _ in range(k):
                    wh = pending.pop(0)
                    rd(n + 1, wh)
                    queue.append(((n + 1) % 6, wh))
            if i == 13 and n in (2, 4, 5):
                tog(vAa[{2: 0, 4: 1, 5: 2}[n]], 0x8000)
        assert not pending
    assert queue == [(0, wh) for wh in RORD][-len(queue):]
    g(f"s_add_u32 s{sI}, s{sI}, 1")
    g(f"s_cmp_lt_u32 s{sI}, 4")
    g("s_cbranch_scc1 L_loop")
    stamp(2)

    g.c("---- statistics")
    g.lab("L_tail")
    g(f"s_lshr_b32 s{sT0}, s{sWV}, 1")
    g(f"s_and_b32 s{sT1}, s{sWV}, 1")
    g(f"s_lshl_b32 s{sT2}, s{sT0}, 6")
    g(f"s_add_u32 s{sT2}, s{sT2}, 48")
    g(f"v_lshl_add_u32 v9, v8, 2, s{sT2}")
    g(f"s_lshl_b32 s{sT2}, s{sT1}, 9")
    g(f"v_lshl_add_u32 v10, v2, 3, s{sT2}")
    g("v_add_u32 v11, 0x10000, v10")
    g("s_waitcnt lgkmcnt(0)")
    for mt in range(4):
        if mt == 3:
            for i in range(1, 4):
                g(f"v_add_u32 v26, {i}, v9")
                g(f"v_cmp_gt_u32 vcc, s{sLIM}, v26")
                g("s_nop 1")
                for nt in range(4):
                    r = T(3, nt) + i
                    g(f"v_cndmask_b32 v{r}, 0, v{r}, vcc")
        for h2 in range(2):
            for nt in range(4):
                sa, qa = 32 + 4 * nt, 34 + 4 * nt
                p = T(mt, nt) + 2 * h2
                if mt == 0 and h2 == 0:
                    g(f"v_pk_mul_f32 v[{qa}:{qa+1}], v[{p}:{p+1}], v[{p}:{p+1}]")
                    continue
                if mt == 0 and h2 == 1:
                    g(f"v_pk_add_f32 v[{sa}:{sa+1}], v[{p-2}:{p-1}], v[{p}:{p+1}]")
                else:
                    g(f"v_pk_add_f32 v[{sa}:{sa+1}], v[{sa}:{sa+1}], v[{p}:{p+1}]")
                g(f"v_pk_fma_f32 v[{qa}:{qa+1}], v[{p}:{p+1}], v[{p}:{p+1}], v[{qa}:{qa+1}]")
    for nt in range(4):
        g(f"v_add_f32 v{48+nt}, v{32+4*nt}, v{33+4*nt}")
        g(f"v_add_f32 v{52+nt}, v{34+4*nt}, v{35+4*nt}")
    g("s_nop 0")
    for bse in (48, 52):
        g(f"v_permlane32_swap_b32 v{bse}, v{bse+2}")
        g(f"v_permlane32_swap_b32 v{bse+1}, v{bse+3}")
    g("s_nop 0")
    for bse in (48, 52):
        g(f"v_add_f32 v{bse}, v{bse}, v{bse+2}")
        g(f"v_add_f32 v{bse+1}, v{bse+1}, v{bse+3}")
    g("s_nop 1")
    for bse in (48, 52):
        g(f"v_permlane16_swap_b32 v{bse}, v{bse+1}")
    g("s_nop 0")
    g("v_add_f32 v53, v52, v53")
    g("v_add_f32 v52, v48, v49")
    g(f"s_cmp_eq_u32 s{sT0}, 0")
    g("s_cbranch_scc1 L_wm0a")
    g("ds_write_b64 v11, v[52:53]")
    g("s_waitcnt lgkmcnt(0)")
    g.lab("L_wm0a")
    g("s_barrier")
    g(f"s_cmp_lg_u32 s{sT0}, 0")
    g("s_cbranch_scc1 L_wm1b")
    g("ds_read_b64 v[54:55], v11")
    g(f"s_lshl_b32 s{sT2}, s{sT}, 10")
    g("v_mov_b32 v56, 0x7fc00000")
    g("s_waitcnt lgkmcnt(0)")
    g("v_pk_add_f32 v[52:53], v[52:53], v[54:55]")
    g("v_cmp_eq_u32 vcc, -1, v52")
    g("s_nop 1")
    g("v_cndmask_b32 v52, v52, v56, vcc")
    g("v_cmp_eq_u32 vcc, -1, v53")
    g("s_nop 1")
    g("v_cndmask_b32 v53, v53, v56, vcc")
    g(f"buffer_store_dwordx2 v[52:53], v10, s[{SG}:{SG+3}], s{sT2} offen sc1")
    g.lab("L_wm1b")
    stamp(3)
    g.c("---- transpose the accumulators through LDS (fp32, column-major, swizzled)")
    g("v_and_b32 v9, 7, v3")
    g("v_lshrrev_b32 v10, 3, v3")
    g("v_lshlrev_b32 v10, 2, v10")
    g("v_xor_b32 v9, v9, v10")
    g("v_xor_b32 v9, v9, v8")
    g("v_lshlrev_b32 v9, 4, v9")
    g("v_lshl_add_u32 v9, v3, 8, v9")
    g(f"s_lshl_b32 s{sT2}, s{sWV}, 14")
    g(f"v_add_u32 v9, s{sT2}, v9")
    for mt in range(4):
        for par in range(2):
            x = ((4 * mt) ^ (8 * par)) * 16
            if x:
                g(f"v_xor_b32 v10, {x}, v9")
                a = 10
            else:
                a = 9
            for nt in (par, par + 2):
                r = T(mt, nt)
                g(f"ds_write_b128 v{a}, v[{r}:{r+3}] offset:{nt*4096}")
    g.L.append("@@SEC loader")

    g(f"s_sub_u32 s{sT3}, s{sWV}, 4")
    g("v_lshrrev_b32 v3, 3, v2")
    g(f"s_lshl_b32 s{sT0}, s{sT3}, 5")
    g(f"v_add_u32 v3, s{sT0}, v3")
    g("v_lshlrev_b32 v3, 10, v3")
    g("v_lshrrev_b32 v4, 4, v2")
    g("v_bfe_u32 v5, v2, 4, 2")
    g("v_lshlrev_b32 v5, 1, v5")
    g("v_and_b32 v6, 7, v2")
    g("v_xor_b32 v5, v5, v6")
    g("v_lshl_add_u32 v16, v5, 4, v3")
    for j in range(1, 4):
        g(f"v_add_u32 v{16+j}, {j*(8192-1024)}, v16")
    g(f"s_lshl_b32 s{sT0}, s{sT3}, 4")
    g(f"v_add_u32 v3, s{sT0}, v4")
    g("v_lshlrev_b32 v3, 9, v3")
    g("v_lshlrev_b32 v5, 1, v4")
    g("v_and_b32 v6, 15, v2")
    g("v_xor_b32 v5, v5, v6")
    g("v_lshl_add_u32 v3, v5, 4, v3")
    g(f"s_lshl_b32 s{sT0}, s{sQ}, 8")
    g(f"v_add_u32 v20, s{sT0}, v3")
    g("v_add_u32 v21, 1024, v20")
    g("v_xor_b32 v22, 128, v20")
    g("v_add_u32 v23, 3072, v22")
    g("v_add_u32 v22, 2048, v22")
    sLX, sLW, sXc, sWc, sRot = 67, 86, 87, 88, 89
    sPC, sPH, sGC, sGH = 90, 91, 92, 93
    sTP = [68, 69, 70]
    g(f"s_lshl_b32 s{sLX}, s{sT3}, 12")
    g(f"s_add_u32 s{sLW}, s{sLX}, 0x10000")
    g(f"s_lshl_b32 s{sPC}, s{sQ}, 14")
    g(f"s_xor_b32 s{sPH}, s{sPC}, 0x4000")
    g(f"s_lshl_b32 s{sGC}, s{sQ}, 9")
    g(f"s_xor_b32 s{sGH}, s{sGC}, 0x200")
    g(f"s_cmp_eq_u32 s{sQ}, 0")
    for p in range(3):
        g(f"s_cselect_b32 s{sTP[p]}, {TAPS[0][p]*131072}, {TAPS[1][p]*131072}" if TAPS[0][p] * TAPS[1][p] == 0 else
          f"s_cselect_b32 s{sTP[p]}, 1, 2")
    g(f"s_lshl_b32 s{sTP[2]}, s{sTP[2]}, 17")
    g(f"s_lshr_b32 s{sRot}, s{sR}, 1")
    g(f"s_mov_b32 s{sI}, 0")
    if stamps:
        g("s_memrealtime s[72:73]")
    g("s_waitcnt lgkmcnt(0)")
    if stamps:
        g("s_memrealtime s[74:75]")
    srd(SX, 4, 5, 16384000)
    srd(SW, 6, 7, 393216)

    def issue(kind):
        if opts.get("noload"):
            return
        if kind in "CH":
            p = pol(xcpol if kind == "C" else xhpol)
            g(f"s_add_u32 m0, s{sLX}, s{sPC if kind == 'C' else sPH}")
            g(f"s_add_u32 s{sT0}, s{sXc}, s{sGC if kind == 'C' else sGH}")
            for j in range(4):
                g(f"buffer_load_dwordx4 v{16+j}, s[{SX}:{SX+3}], s{sT0} offen offset:{j*1024}{p} lds")
        else:
            pos = int(kind)
            g(f"s_add_u32 m0, s{sLW}, {pos*16384}")
            g(f"s_add_u32 s{sT0}, s{sWc}, s{sTP[pos]}")
            for j in range(4):
                g(f"buffer_load_dwordx4 v{20+j}, s[{SW}:{SW+3}], s{sT0} offen offset:{j*1024} lds")

    W_ = 63 if opts.get("noload") else 12
    g.lab("L_lloop")
    g(f"s_add_u32 s{sT1}, s{sRot}, s{sI}")
    g(f"s_and_b32 s{sT1}, s{sT1}, 3")
    g(f"s_lshl_b32 s{sWc}, s{sT1}, 15")
    g(f"s_lshl_b32 s{sT1}, s{sT1}, 7")
    g(f"s_add_u32 s{sXc}, s{sXB}, s{sT1}")
    issue("C")
    issue("0")
    g(f"s_cmp_eq_u32 s{sI}, 0")
    g("s_cbranch_scc1 L_ls1")
    g(f"s_waitcnt vmcnt({W_})")
    g("s_barrier")
    g.lab("L_ls1")
    issue("H")
    g(f"s_cmp_eq_u32 s{sI}, 0")
    g("s_cbranch_scc1 L_ls2")
    g(f"s_waitcnt vmcnt({W_})")
    g("s_barrier")
    g.lab("L_ls2")
    issue("1")
    issue("2")
    g(f"s_xor_b32 s{sLX}, s{sLX}, 0x8000")
    g(f"s_xor_b32 s{sLW}, s{sLW}, 0xc000")
    g(f"s_add_u32 s{sI}, s{sI}, 1")
    g(f"s_cmp_lt_u32 s{sI}, 4")
    g(f"s_waitcnt vmcnt({W_})")
    g("s_barrier")
    g("s_cbranch_scc1 L_lloop")
    common_srds()
    if stamps:
        g(f"v_mov_b32 v{VS}, s74")
        g(f"buffer_store_dword v{VS}, v{VS+1}, s[{SST}:{SST+3}], 0 offen")
        g(f"v_mov_b32 v{VS}, s72")
        g(f"buffer_store_dword v{VS}, v{VS+1}, s[{SST}:{SST+3}], 0 offen offset:12")
    gb_loads()
    g(f"s_lshl_b32 s{sT0}, s{sGRP}, 6")
    g(f"v_mov_b32 v24, s{sT0}")
    g(f"buffer_load_dword v5, v24, s[{SD}:{SD+3}], 0 offen sc1")
    g("s_waitcnt vmcnt(7)")
    g("s_barrier")
    g("s_waitcnt vmcnt(3)")
    stamp(1)
    g("s_barrier")
    g.lab("L_ljoin")
    g("s_barrier")
    g.c("wait until every workgroup of the group has armed its slot")
    g(f"s_mov_b32 s{sSPIN}, 0")
    g(f"s_waitcnt vmcnt({1 if (opts.get('tpf', False) and not stamps) else 0})")
    g.lab("L_flagpoll")
    g("v_cmp_eq_u32 vcc, 0, v5")
    g(f"s_add_u32 s{sSPIN}, s{sSPIN}, 1")
    g(f"s_cmp_ge_u32 s{sSPIN}, {SPINMAX}")
    g("s_cbranch_scc1 L_noflagwait")
    g("s_cbranch_vccz L_noflagwait")
    g("s_sleep 16")
    g(f"buffer_load_dword v5, v24, s[{SD}:{SD+3}], 0 offen sc1")
    g("s_waitcnt vmcnt(0)")
    g("s_branch L_flagpoll")
    g.lab("L_noflagwait")
    stamp(2)
    g("s_barrier")

    g("s_branch L_join")
    g.L.append("@@SEC join")
    g.lab("L_join")
    GV = 96
    g("v_and_b32 v4, 7, v2")
    g("v_lshrrev_b32 v3, 3, v2")
    g(f"s_lshl_b32 s{sT0}, s{sWV}, 7")
    g(f"v_lshl_add_u32 v7, v4, 4, s{sT0}")
    g("v_lshl_add_u32 v12, v3, 10, v7")
    g("v_add_u32 v11, 0x14000, v7")
    g("s_waitcnt lgkmcnt(0)")
    g("s_barrier")
    g(f"s_mov_b32 s{sSPIN}, 0")

    def gfirst():
        for k in range(8):
            g(f"s_mov_b32 s{sT1}, {k*8192}")
            g(f"buffer_load_dwordx4 v[{GV+4*k}:{GV+4*k+3}], v12, s[{SG}:{SG+3}], s{sT1} offen{pol(gpol)}")
    gpol = opts.get("gpol", "sc1")
    if not opts.get("glate"):
        gfirst()
    g(f"s_and_b32 s{sT0}, s{sWV}, 3")
    g(f"s_lshr_b32 s{sT1}, s{sWV}, 2")
    g(f"s_lshl_b32 s{sT2}, s{sT1}, 3")
    g(f"v_add_u32 v3, s{sT2}, v3")
    g("v_and_b32 v5, 3, v2")
    g("v_lshlrev_b32 v5, 2, v5")
    g("v_xor_b32 v5, v5, v3")
    g("v_lshlrev_b32 v5, 4, v5")
    g("v_lshl_add_u32 v5, v4, 11, v5")
    g(f"s_lshl_b32 s{sT2}, s{sT0}, 14")
    g(f"v_add_u32 v5, s{sT2}, v5")
    D = 64
    for e in range(8):
        if e:
            g(f"v_xor_b32 v6, {e*16}, v5")
            a = 6
        else:
            a = 5
        g(f"ds_read_b128 v[{D+4*e}:{D+4*e+3}], v{a} offset:{e*256}")
    g(f"s_lshr_b32 s{sT2}, s{sT0}, 1")
    g(f"s_lshl_b32 s{sT2}, s{sT2}, 6")
    g(f"v_lshl_add_u32 v6, v3, 2, s{sT2}")
    g(f"s_and_b32 s{sT2}, s{sT0}, 1")
    g(f"s_lshl_b32 s{sT3}, s{sT2}, 7")
    g(f"v_lshl_add_u32 v7, v4, 4, s{sT3}")
    g("v_mov_b32 v9, 0x40000000")
    for rho in range(4):
        g(f"v_add_u32 v8, {rho}, v6")
        g(f"v_cmp_gt_u32 vcc, s{sLIM}, v8")
        g(f"v_lshl_add_u32 v{13+rho}, v8, 9, v7")
        g("s_nop 0")
        g(f"v_cndmask_b32 v{13+rho}, v9, v{13+rho}, vcc")
    g(f"s_lshl_b32 s{sT3}, s{sT2}, 9")
    g(f"s_add_u32 s{sT3}, s{sT3}, 0x14000")
    g(f"v_lshl_add_u32 v17, v4, 6, s{sT3}")
    c0 = -2.0 * 1.4426950408889634 * 0.7978845608028654
    c1 = c0 * 0.044715
    g(f"v_mov_b32 v28, {f32bits(c1):#x}")
    g(f"v_mov_b32 v29, {f32bits(c0):#x}")
    if opts.get("glate"):
        if int(opts.get("gdelay", 0)):
            g(f"s_sleep {int(opts.get('gdelay', 0))}")
        gfirst()
    g.lab("L_gpoll")
    g(f"s_mov_b32 s{sMASK}, 0")
    g("s_waitcnt vmcnt(0)")
    if opts.get("fastchk", True):
        g(f"v_max3_u32 v3, v{GV}, v{GV+1}, v{GV+2}")
        g(f"v_max3_u32 v8, v{GV+16}, v{GV+17}, v{GV+18}")
        for k in range(3, 15, 2):
            g(f"v_max3_u32 v3, v3, v{GV+k}, v{GV+k+1}")
            g(f"v_max3_u32 v8, v8, v{GV+16+k}, v{GV+17+k}")
        g(f"v_max3_u32 v3, v3, v{GV+15}, v{GV+31}")
        g("v_max_u32 v3, v3, v8")
        g("v_cmp_eq_u32 vcc, -1, v3")
        g("s_cbranch_vccz L_gdone")
    for k in range(8):
        b = GV + 4 * k
        g(f"v_max3_u32 v3, v{b}, v{b+1}, v{b+2}")
        g(f"v_max_u32 v3, v3, v{b+3}")
        g("v_cmp_eq_u32 vcc, -1, v3")
        g("s_cmp_lg_u64 vcc, 0")
        g(f"s_cselect_b32 s{sT0}, {1<<k}, 0")
        g(f"s_or_b32 s{sMASK}, s{sMASK}, s{sT0}")
    g("s_cbranch_scc0 L_gdone")
    g(f"s_add_u32 s{sSPIN}, s{sSPIN}, 1")
    g(f"s_cmp_ge_u32 s{sSPIN}, {SPINMAX}")
    g("s_cbranch_scc1 L_gdone")
    if int(opts.get("gsleep", 0)):
        g(f"s_sleep {int(opts.get('gsleep', 0))}")
    for k in range(8):
        g(f"s_bitcmp1_b32 s{sMASK}, {k}")
        g(f"s_cbranch_scc0 L_gskip{k}")
        g(f"s_mov_b32 s{sT1}, {k*8192}")
        g(f"buffer_load_dwordx4 v[{GV+4*k}:{GV+4*k+3}], v12, s[{SG}:{SG+3}], s{sT1} offen{pol(opts.get('gpol2', gpol))}")
        g.lab(f"L_gskip{k}")
    g("s_branch L_gpoll")
    g.lab("L_gdone")
    stamp(4)
    for step in (16, 8, 4):
        for a in range(GV, GV + step, 2):
            g(f"v_pk_add_f32 v[{a}:{a+1}], v[{a}:{a+1}], v[{a+step}:{a+step+1}]")
    g(f"s_mov_b32 s{sT0}, {f32bits(1.0/7999.0):#x}")
    g(f"s_mov_b32 s{sT1}, {f32bits(1e-5):#x}")
    for i in range(4):
        g(f"v_add_f32_dpp v{GV+4+i}, v{GV+i}, v{GV+i} row_ror:8 row_mask:0xf bank_mask:0xf")
    g("v_lshlrev_b32 v18, 16, v30")
    g("v_and_b32 v19, 0xffff0000, v30")
    for i in range(4):
        g(f"v_mov_b32 v{GV+i}, v{GV+4+i}")
    g("v_lshlrev_b32 v20, 16, v31")
    g("v_and_b32 v21, 0xffff0000, v31")
    for i in range(4):
        g(f"v_permlane16_swap_b32 v{GV+i}, v{GV+4+i}")
    g("s_nop 0")
    for a in (0, 2):
        g(f"v_pk_add_f32 v[{GV+a}:{GV+a+1}], v[{GV+a}:{GV+a+1}], v[{GV+4+a}:{GV+5+a}]")
    for i in range(4):
        g(f"v_mov_b32 v{GV+4+i}, v{GV+i}")
    g("s_nop 1")
    for i in range(4):
        g(f"v_permlane32_swap_b32 v{GV+i}, v{GV+4+i}")
    g("s_nop 0")
    for a in (0, 2):
        g(f"v_pk_add_f32 v[{GV+a}:{GV+a+1}], v[{GV+a}:{GV+a+1}], v[{GV+4+a}:{GV+5+a}]")
    g(f"v_pk_mul_f32 v[{GV}:{GV+1}], v[{GV}:{GV+1}], s[{sT0}:{sT0+1}] op_sel_hi:[1,0]")
    g(f"v_pk_mul_f32 v[{GV+2}:{GV+3}], v[{GV+2}:{GV+3}], s[{sT0}:{sT0+1}] op_sel_hi:[1,0]")
    for op in range(6):
        for cidx in range(2):
            S, Q = GV + 2 * cidx, GV + 2 * cidx + 1
            if op == 0:
                g(f"v_fma_f32 v{Q}, -v{S}, v{S}, v{Q}")
            elif op == 1:
                g(f"v_max_f32 v{Q}, 0, v{Q}")
            elif op == 2:
                g(f"v_add_f32 v{Q}, s{sT1}, v{Q}")
            elif op == 3:
                g(f"v_rsq_f32 v{Q}, v{Q}")
                if cidx == 1:
                    g("s_nop 0")
            elif op == 4:
                g(f"v_mul_f32 v{22+2*cidx}, v{18+cidx}, v{Q}")
            else:
                g(f"v_fma_f32 v{23+2*cidx}, -v{S}, v{22+2*cidx}, v{20+cidx}")
    g("s_mov_b64 exec, 0xff")
    g("ds_write_b128 v11, v[22:25]")
    g("s_mov_b64 exec, -1")
    P = 32
    g("s_waitcnt lgkmcnt(0)")
    g("s_barrier")
    for k in range(4):
        g(f"ds_read_b128 v[{P+4*k}:{P+4*k+3}], v17 offset:{k*16}")
    g("s_waitcnt lgkmcnt(0)")
    stamp(5)
    BC = "op_sel:[0,0,1] op_sel_hi:[1,0,1]"
    U = 96
    for rp in range(2):
        for e in range(8):
            d = D + 4 * e + 2 * rp
            g(f"v_pk_fma_f32 v[{d}:{d+1}], v[{d}:{d+1}], v[{P+2*e}:{P+2*e+1}], v[{P+2*e}:{P+2*e+1}] {BC}")
        for e in range(8):
            d = D + 4 * e + 2 * rp
            u = U + 2 * e
            g(f"v_pk_mul_f32 v[{u}:{u+1}], v[{d}:{d+1}], v[{d}:{d+1}]")
        for e in range(8):
            u = U + 2 * e
            g(f"v_pk_fma_f32 v[{u}:{u+1}], v[{u}:{u+1}], v[28:29], v[28:29] {BC}")
        for e in range(8):
            d = D + 4 * e + 2 * rp
            u = U + 2 * e
            g(f"v_pk_mul_f32 v[{u}:{u+1}], v[{u}:{u+1}], v[{d}:{d+1}]")
        for e in range(16):
            g(f"v_exp_f32 v{U+e}, v{U+e}")
        for e in range(8):
            u = U + 2 * e
            g(f"v_pk_add_f32 v[{u}:{u+1}], v[{u}:{u+1}], 1.0 op_sel_hi:[1,0]")
        for e in range(16):
            g(f"v_rcp_f32 v{U+e}, v{U+e}")
        for e in range(8):
            d = D + 4 * e + 2 * rp
            u = U + 2 * e
            g(f"v_pk_mul_f32 v[{d}:{d+1}], v[{u}:{u+1}], v[{d}:{d+1}]")
        for r2 in range(2):
            rho = 2 * rp + r2
            O = 112 + 4 * rho
            for k in range(4):
                g(f"v_cvt_pk_bf16_f32 v{O+k}, v{D+4*(2*k)+rho}, v{D+4*(2*k+1)+rho}")
            g(f"buffer_store_dwordx4 v[{O}:{O+3}], v{13+rho}, s[{SO}:{SO+3}], s{sOB} offen{pol(opol)}")
    if stamps:
        g("s_waitcnt vmcnt(0)")
        stamp(6)
    if opts.get("dbgt"):
        g("s_waitcnt vmcnt(0)")
        g("s_memrealtime s[80:81]")
        g("s_memtime s[82:83]")
        g("s_waitcnt lgkmcnt(0)")
        g("s_and_b32 s84, s2, 0xf9")
        g("s_cmp_lg_u32 s84, 0")
        g("s_cbranch_scc1 L_end")
        g(f"s_cmp_lg_u32 s{sWV}, 4")
        g("s_cbranch_scc1 L_end")
        g("s_sub_u32 s80, s80, s76")
        g("s_sub_u32 s82, s82, s78")
        g("v_mov_b32 v4, s80")
        g("v_mov_b32 v5, s82")
        g("s_lshl_b32 s84, s2, 2")
        g("s_add_u32 s84, s84, 8")
        g("v_mov_b32 v6, s84")
        g("s_mov_b64 exec, 1")
        g(f"buffer_store_dwordx2 v[4:5], v6, s[{SD}:{SD+3}], 0 offen")
    g.lab("L_end")
    g("s_endpgm")
    g.c("---- the four workgroups without a tile arm the slots of one group each")
    g.lab("L_armer")
    g(f"s_lshl_b32 s{sGRP}, s{sPI}, 1")
    g(f"s_add_u32 s{sGRP}, s{sGRP}, s{sQ}")
    g("v_lshlrev_b32 v3, 4, v0")
    for i in range(4, 8):
        g(f"v_mov_b32 v{i}, -1")
    g("s_waitcnt lgkmcnt(0)")
    srd(SD, 14, 15, 256)
    g(f"s_lshl_b32 s{sT0}, s{sGRP}, 16")
    g(f"s_add_u32 s{SG}, s16, s{sT0}")
    g(f"s_addc_u32 s{SG+1}, s17, 0")
    g(f"s_and_b32 s{SG+1}, s{SG+1}, 0xffff")
    g(f"s_mov_b32 s{SG+2}, {63*1024}")
    g(f"s_mov_b32 s{SG+3}, 0x00020000")
    for k in range(8):
        g(f"s_mov_b32 s{sT1}, {k*8192}")
        g(f"buffer_store_dwordx4 v[4:7], v3, s[{SG}:{SG+3}], s{sT1} offen sc1")
    g("s_waitcnt vmcnt(0)")
    g("s_barrier")
    g("v_cmp_eq_u32 vcc, 0, v0")
    g(f"s_lshl_b32 s{sT0}, s{sGRP}, 6")
    g(f"v_mov_b32 v8, s{sT0}")
    g("v_mov_b32 v9, 1")
    g("s_and_saveexec_b64 s[4:5], vcc")
    g("s_cbranch_execz L_armend")
    g(f"buffer_store_dword v9, v8, s[{SD}:{SD+3}], 0 offen sc1")
    g.lab("L_armend")
    g("s_endpgm")

    out = HEADER + """;
; Strided conv (K=3, s=2) as a GEMM (M=2*7999, N=256, K=768) + per-(batch,channel) normalisation + GELU, one launch.
;  * 252 workgroups own a tile of 127 output rows x 128 channels; waves 0-3 run 16x16x32 bf16 MFMAs out of LDS,
;    waves 4-7 stream x (even/odd row planes) and w into LDS with LDS-DMA, one s_barrier per 64-channel tap stage.
;  * every tile publishes its column sums / sums of squares (fp32) in d_ws; 4 helper workgroups first fill those
;    slots with a sentinel and raise a flag in d_debug, so readers can tell this launch's records from old data.
;  * accumulators are transposed through LDS while the records travel; then scale/shift, GELU(tanh), bf16 stores.
; Generated by gen11.py (own generator script).
"""
    out += "; @launch grid=(256,1,1) block=(512,1,1) lds=163840\n"
    out += '.amdgcn_target "amdgcn-amd-amdhsa--gfx950"\n.text\n'
    out += f".globl {NAME}_kernel\n.p2align 8\n.type {NAME}_kernel,@function\n{NAME}_kernel:\n"
    secs = {"head": []}
    cur = "head"
    for ln in g.L:
        if ln.startswith("@@SEC "):
            cur = ln[6:]
            secs[cur] = []
        else:
            secs[cur].append(ln)
    order = ["head", "loader", "compute", "join"]
    out += "\n".join(ln for k in order for ln in secs[k]) + "\nL_codeend:\n"
    nv = 168 if stamps else 160
    out += f""".section .rodata,"a"
.p2align 6
.amdhsa_kernel {NAME}_kernel
  .amdhsa_next_free_vgpr {nv}
  .amdhsa_next_free_sgpr 96
  .amdhsa_accum_offset {nv}
  .amdhsa_group_segment_fixed_size 0
  .amdhsa_kernarg_size 56
  .amdhsa_user_sgpr_count 2
  .amdhsa_user_sgpr_kernarg_segment_ptr 1
  .amdhsa_system_sgpr_workgroup_id_x 1
  .amdhsa_float_denorm_mode_32 3
.end_amdhsa_kernel
"""
    return out


if __name__ == "__main__":
    opts = {}
    outp = f"cdna_kernels/{NAME}.s"
    for a in sys.argv[1:]:
        if a.startswith("-o="):
            outp = a[3:]
        else:
            k, _, v = a.partition("=")
            if v in ("0", "1") and k not in ("R", "gsleep", "bpos", "pace", "pacemod", "gdelay"):
                v = bool(int(v))
            opts[k] = v
    open(outp, "w").write(build(opts))
    print("wrote", outp)
```

```python
import sys
import struct

NAME = "standalone__self_sup_conv_stem_wavlm__speech"

HEADER = """; Kernarg layout for this problem (56 bytes, ptrs only, base s[0:1]):
;   offset  48: d_ws      268435456 bytes workspace
"""


def f32bits(x):
    return struct.unpack("<I", struct.pack("<f", x))[0]


class Gen:
    def __init__(self, opts):
        self.o = opts
        self.L = []

    def __call__(self, s):
        self.L.append("    " + s)

    def lab(self, s):
        self.L.append(s + ":")

    def c(self, s):
        self.L.append("    ; " + s)


TAPS = {0: [0, 2, 1], 1: [1, 0, 2]}
XNEED = {0: ["C", "C", "H"], 1: ["C", "H", "H"]}


def build(opts):
    g = Gen(opts)
    xcpol = opts.get("xcpol", "")
    xhpol = opts.get("xhpol", "")
    opol = opts.get("opol", "nt")
    stamps = opts.get("stamps", False)
    R = int(opts.get("R", 3))
    SPINMAX = "0x40000"
    streams = opts.get("streams", "C01H2,C0H12").split(",")
    pol = lambda p: (" " + p.replace("+", " ")) if p else ""

    SX, SW, SO, SG, SD, SGA, SBE = 20, 24, 28, 32, 36, 40, 44
    sXCD, sR, sQ, sPI, sB, sT, sWV = 50, 51, 52, 53, 54, 55, 56
    sXB, sOB, sLIM, sGRP = 57, 58, 59, 60
    sI, sT0, sT1, sT2, sT3 = 61, 62, 63, 64, 65
    sFI = 66
    sLB = 67
    sMASK, sNEW = 68, 69
    sSPIN = 72
    sXC, sWC = 86, 90
    SST = 76
    sTS = 80
    VS = 160

    def srd(base, lo, hi, nbytes):
        g(f"s_mov_b32 s{base}, s{lo}")
        g(f"s_and_b32 s{base+1}, s{hi}, 0xffff")
        g(f"s_mov_b32 s{base+2}, {nbytes}")
        g(f"s_mov_b32 s{base+3}, 0x00020000")

    def stamp(slot):
        if not stamps:
            return
        g(f"s_memrealtime s[{sTS}:{sTS+1}]")
        if slot in (1, 2):
            g(f"s_memtime s[{sTS+2}:{sTS+3}]")
        g("s_waitcnt lgkmcnt(0)")
        g(f"v_mov_b32 v{VS}, s{sTS}")
        g(f"buffer_store_dword v{VS}, v{VS+1}, s[{SST}:{SST+3}], 0 offen offset:{slot*4}")
        if slot in (1, 2):
            g(f"v_mov_b32 v{VS}, s{sTS+2}")
            g(f"buffer_store_dword v{VS}, v{VS+1}, s[{SST}:{SST+3}], 0 offen offset:{(slot+7)*4}")

    if stamps:
        g(f"s_memrealtime s[{sTS+4}:{sTS+5}]")
    if opts.get("dbgt"):
        g("s_memrealtime s[76:77]")
        g("s_memtime s[78:79]")
    g("s_cmp_ge_u32 s2, 256")
    g("s_cbranch_scc1 L_end")
    g("s_load_dwordx8 s[4:11], s[0:1], 0")
    g("s_load_dwordx4 s[12:15], s[0:1], 32")
    g("s_load_dwordx2 s[16:17], s[0:1], 48")
    g(f"s_and_b32 s{sXCD}, s2, 7")
    g(f"s_lshr_b32 s{sR}, s2, 3")
    g(f"s_and_b32 s{sQ}, s{sR}, 1")
    g(f"s_lshr_b32 s{sPI}, s{sR}, 1")
    g(f"s_lshl_b32 s{sPI}, s{sPI}, 3")
    g(f"s_add_u32 s{sPI}, s{sPI}, s{sXCD}")
    g(f"s_cmp_lt_u32 s{sPI}, 2")
    g("s_cbranch_scc1 L_armer")
    g(f"s_sub_u32 s{sPI}, s{sPI}, 2")
    g(f"s_cmp_ge_u32 s{sPI}, 63")
    g(f"s_cselect_b32 s{sB}, 1, 0")
    g(f"s_mul_i32 s{sT}, s{sB}, 63")
    g(f"s_sub_u32 s{sT}, s{sPI}, s{sT}")
    g("v_lshrrev_b32 v1, 6, v0")
    g("v_and_b32 v2, 63, v0")
    g(f"v_readfirstlane_b32 s{sWV}, v1")
    g(f"s_mul_i32 s{sXB}, s{sB}, 16000")
    g(f"s_mul_i32 s{sT0}, s{sT}, 254")
    g(f"s_add_u32 s{sXB}, s{sXB}, s{sT0}")
    g(f"s_lshl_b32 s{sXB}, s{sXB}, 9")
    g(f"s_mul_i32 s{sOB}, s{sB}, 7999")
    g(f"s_mul_i32 s{sT0}, s{sT}, 127")
    g(f"s_add_u32 s{sOB}, s{sOB}, s{sT0}")
    g(f"s_lshl_b32 s{sOB}, s{sOB}, 9")
    g(f"s_lshl_b32 s{sT1}, s{sQ}, 8")
    g(f"s_add_u32 s{sOB}, s{sOB}, s{sT1}")
    g(f"s_sub_u32 s{sLIM}, 7999, s{sT0}")
    g(f"s_min_u32 s{sLIM}, s{sLIM}, 127")
    g(f"s_lshl_b32 s{sGRP}, s{sB}, 1")
    g(f"s_add_u32 s{sGRP}, s{sGRP}, s{sQ}")
    g(f"s_cmp_lt_u32 s{sWV}, 4")
    g("s_cbranch_scc1 L_compute")
    g.L.append("@@SEC compute")
    g.lab("L_compute")

    def common_srds():
        srd(SGA, 8, 9, 512)
        srd(SBE, 10, 11, 512)
        srd(SO, 12, 13, 8190976)
        srd(SD, 14, 15, 256)
        g(f"s_lshl_b32 s{sT0}, s{sGRP}, 16")
        g(f"s_add_u32 s{SG}, s16, s{sT0}")
        g(f"s_addc_u32 s{SG+1}, s17, 0")
        g(f"s_and_b32 s{SG+1}, s{SG+1}, 0xffff")
        g(f"s_mov_b32 s{SG+2}, {63*1024}")
        g(f"s_mov_b32 s{SG+3}, 0x00020000")
        if stamps:
            g(f"s_add_u32 s{SST}, s16, 0x100000")
            g(f"s_addc_u32 s{SST+1}, s17, 0")
            g(f"s_and_b32 s{SST+1}, s{SST+1}, 0xffff")
            g(f"s_mov_b32 s{SST+2}, 0x10000")
            g(f"s_mov_b32 s{SST+3}, 0x00020000")
            g(f"s_lshl_b32 s{sT0}, s2, 8")
            g(f"s_lshr_b32 s{sT1}, s{sWV}, 2")
            g(f"s_lshl_b32 s{sT1}, s{sT1}, 7")
            g(f"s_add_u32 s{sT0}, s{sT0}, s{sT1}")
            g(f"v_mov_b32 v{VS+1}, s{sT0}")
            g(f"v_and_b32 v{VS}, 0xff, v0")
            g(f"v_cmp_ne_u32 vcc, 0, v{VS}")
            g(f"v_mov_b32 v{VS}, 0x40000000")
            g("s_nop 1")
            g(f"v_cndmask_b32 v{VS+1}, v{VS+1}, v{VS}, vcc")

    def gb_loads():
        g("v_and_b32 v29, 7, v2")
        g(f"s_lshl_b32 s{sT0}, s{sWV}, 5")
        g(f"v_lshl_add_u32 v29, v29, 2, s{sT0}")
        g(f"s_lshl_b32 s{sT0}, s{sQ}, 8")
        g(f"buffer_load_dword v30, v29, s[{SGA}:{SGA+3}], s{sT0} offen")
        g(f"buffer_load_dword v31, v29, s[{SBE}:{SBE+3}], s{sT0} offen")

    vAa = [[12 + p * 2 + ks for ks in range(2)] for p in range(3)]
    vBa = [20, 21, 22, 23]
    FA = [32, 128]
    FB = [48, 144]
    ACC = 64

    def T(mt, nt):
        return ACC + (mt * 4 + nt) * 4

    g.c("---- compute wave setup")
    if opts.get("prio", False):
        g("s_setprio 3")
    if opts.get("cpf", False):
        g.c("pull the kernel's own code into L2 (64 B per lane)")
        g("s_getpc_b64 s[94:95]")
        g.lab("L_pc")
        g(f"s_sub_u32 s94, s94, L_pc-{NAME}_kernel")
        g("s_subb_u32 s95, s95, 0")
        g("v_lshlrev_b32 v30, 6, v0")
        g(f"v_min_u32 v30, L_codeend-{NAME}_kernel-4, v30")
        g("global_load_dword v31, v30, s[94:95]")
    g(f"s_lshr_b32 s{sT0}, s{sWV}, 1")
    g(f"s_and_b32 s{sT1}, s{sWV}, 1")
    g(f"s_lshl_b32 s{sT2}, s{sT0}, 6")
    g("v_and_b32 v3, 15, v2")
    g("v_lshrrev_b32 v8, 4, v2")
    g(f"v_add_u32 v9, s{sT2}, v3")
    for v in range(2):
        if v == 1:
            g("v_add_u32 v9, 1, v9")
        g("v_and_b32 v10, 6, v9")
        g("v_xor_b32 v10, v10, v8")
        g("v_lshlrev_b32 v10, 4, v10")
        g(f"v_lshl_add_u32 v{4+v}, v9, 7, v10")
    g("v_add_u32 v6, 0x4000, v4")
    g(f"s_cmp_eq_u32 s{sQ}, 0")
    g("s_cselect_b64 vcc, -1, 0")
    g(f"v_cndmask_b32 v{vAa[0][0]}, v6, v4, vcc")
    g(f"v_cndmask_b32 v{vAa[1][0]}, v4, v5, vcc")
    g(f"v_cndmask_b32 v{vAa[2][0]}, v5, v6, vcc")
    for p in range(3):
        g(f"v_xor_b32 v{vAa[p][1]}, 64, v{vAa[p][0]}")
    g("v_bfe_u32 v9, v2, 2, 2")
    g("v_lshl_add_u32 v10, v8, 3, v9")
    g("v_lshlrev_b32 v10, 8, v10")
    g("v_and_b32 v11, 3, v2")
    g("v_lshl_add_u32 v10, v11, 3, v10")
    g("v_and_b32 v11, 1, v8")
    g("v_lshl_or_b32 v11, v11, 2, v9")
    g(f"s_lshl_b32 s{sT2}, s{sT1}, 2")
    g(f"v_xor_b32 v11, s{sT2}, v11")
    g("v_lshl_add_u32 v10, v11, 5, v10")
    g(f"v_add_u32 v{vBa[0]}, 0x10000, v10")
    for nt in range(1, 4):
        g(f"v_xor_b32 v{vBa[nt]}, {nt*32}, v{vBa[0]}")
    for i in range(64):
        g(f"v_mov_b32 v{ACC+i}, 0")
    g("s_waitcnt lgkmcnt(0)")
    common_srds()
    gb_loads()
    if stamps:
        g(f"v_mov_b32 v{VS}, s{sTS+4}")
        g(f"buffer_store_dword v{VS}, v{VS+1}, s[{SST}:{SST+3}], 0 offen")

    RORD = ["A0", "B0a", "B0b", "B1a", "B1b", "A1", "B2a", "B2b", "B3a", "B3b", "A2", "A3"]
    MORD = [(0, 0), (0, 1), (1, 0), (1, 1), (0, 2), (0, 3), (1, 2), (1, 3),
            (2, 0), (2, 1), (2, 2), (2, 3), (3, 0), (3, 1), (3, 2), (3, 3)]

    def rd(n, which):
        if opts.get("noread"):
            return
        st = n & 1
        pos, ks = divmod(n % 6, 2)
        if which[0] == "A":
            mt = int(which[1])
            r = FA[st] + 4 * mt
            g(f"ds_read_b128 v[{r}:{r+3}], v{vAa[pos][ks]} offset:{mt*2048}")
        else:
            nt, j = int(which[1]), "ab".index(which[2])
            r = FB[st] + 4 * nt + 2 * j
            g(f"ds_read_b64_tr_b16 v[{r}:{r+1}], v{vBa[nt]} offset:{pos*16384+ks*8192+j*1024}")

    def mf(n, mt, nt):
        if opts.get("nomfma"):
            return
        st = n & 1
        t = T(mt, nt)
        fa, fb = FA[st] + 4 * mt, FB[st] + 4 * nt
        g(f"v_mfma_f32_16x16x32_bf16 v[{t}:{t+3}], v[{fa}:{fa+3}], v[{fb}:{fb+3}], v[{t}:{t+3}]")
        pace = int(opts.get("pace", -1))
        if pace >= 0 and (mt * 4 + nt) % int(opts.get("pacemod", 1)) == 0:
            g(f"s_nop {pace}")

    def tog(regs, val):
        for r in regs:
            g(f"v_xor_b32 v{r}, {val:#x}, v{r}")

    BPOS = int(opts.get("bpos", 4))
    g(f"s_mov_b32 s{sI}, 0")
    g("s_barrier")
    stamp(1)
    for wh in RORD:
        rd(0, wh)
    g.lab("L_loop")
    queue = [(0, wh) for wh in RORD]
    for n in range(6):
        last = (n & 1) == 1
        pending = list(RORD)
        first_rd = BPOS if last else 0
        for i, (mt, nt) in enumerate(MORD):
            needs = {(n, f"A{mt}"), (n, f"B{nt}a"), (n, f"B{nt}b")}
            p_ = max((k for k, t in enumerate(queue) if t in needs), default=-1)
            if p_ >= 0:
                g(f"s_waitcnt lgkmcnt({len(queue) - 1 - p_})")
                del queue[:p_ + 1]
            mf(n, mt, nt)
            if last and i == BPOS - 1:
                if n == 5:
                    tog(vBa, 0xc000)
                g("s_waitcnt lgkmcnt(0)")
                del queue[:]
                g("s_barrier")
            if i >= first_rd - (1 if last else 0) and pending and not (last and i < BPOS - 1):
                k = 1
                rem = 16 - i
                k = -(-len(pending) // rem)
                for _ in range(k):
                    wh = pending.pop(0)
                    rd(n + 1, wh)
                    queue.append(((n + 1) % 6, wh))
            if i == 13 and n in (2, 4, 5):
                tog(vAa[{2: 0, 4: 1, 5: 2}[n]], 0x8000)
        assert not pending
    assert queue == [(0, wh) for wh in RORD][-len(queue):]
    g(f"s_add_u32 s{sI}, s{sI}, 1")
    g(f"s_cmp_lt_u32 s{sI}, 4")
    g("s_cbranch_scc1 L_loop")
    stamp(2)

    g.c("---- statistics")
    g.lab("L_tail")
    g(f"s_lshr_b32 s{sT0}, s{sWV}, 1")
    g(f"s_and_b32 s{sT1}, s{sWV}, 1")
    g(f"s_lshl_b32 s{sT2}, s{sT0}, 6")
    g(f"s_add_u32 s{sT2}, s{sT2}, 48")
    g(f"v_lshl_add_u32 v9, v8, 2, s{sT2}")
    g(f"s_lshl_b32 s{sT2}, s{sT1}, 9")
    g(f"v_lshl_add_u32 v10, v2, 3, s{sT2}")
    g("v_add_u32 v11, 0x10000, v10")
    g("s_waitcnt lgkmcnt(0)")
    for mt in range(4):
        if mt == 3:
            for i in range(1, 4):
                g(f"v_add_u32 v26, {i}, v9")
                g(f"v_cmp_gt_u32 vcc, s{sLIM}, v26")
                g("s_nop 1")
                for nt in range(4):
                    r = T(3, nt) + i
                    g(f"v_cndmask_b32 v{r}, 0, v{r}, vcc")
        for h2 in range(2):
            for nt in range(4):
                sa, qa = 32 + 4 * nt, 34 + 4 * nt
                p = T(mt, nt) + 2 * h2
                if mt == 0 and h2 == 0:
                    g(f"v_pk_mul_f32 v[{qa}:{qa+1}], v[{p}:{p+1}], v[{p}:{p+1}]")
                    continue
                if mt == 0 and h2 == 1:
                    g(f"v_pk_add_f32 v[{sa}:{sa+1}], v[{p-2}:{p-1}], v[{p}:{p+1}]")
                else:
                    g(f"v_pk_add_f32 v[{sa}:{sa+1}], v[{sa}:{sa+1}], v[{p}:{p+1}]")
                g(f"v_pk_fma_f32 v[{qa}:{qa+1}], v[{p}:{p+1}], v[{p}:{p+1}], v[{qa}:{qa+1}]")
    for nt in range(4):
        g(f"v_add_f32 v{48+nt}, v{32+4*nt}, v{33+4*nt}")
        g(f"v_add_f32 v{52+nt}, v{34+4*nt}, v{35+4*nt}")
    g("s_nop 0")
    for bse in (48, 52):
        g(f"v_permlane32_swap_b32 v{bse}, v{bse+2}")
        g(f"v_permlane32_swap_b32 v{bse+1}, v{bse+3}")
    g("s_nop 0")
    for bse in (48, 52):
        g(f"v_add_f32 v{bse}, v{bse}, v{bse+2}")
        g(f"v_add_f32 v{bse+1}, v{bse+1}, v{bse+3}")
    g("s_nop 1")
    for bse in (48, 52):
        g(f"v_permlane16_swap_b32 v{bse}, v{bse+1}")
    g("s_nop 0")
    g("v_add_f32 v53, v52, v53")
    g("v_add_f32 v52, v48, v49")
    g(f"s_cmp_eq_u32 s{sT0}, 0")
    g("s_cbranch_scc1 L_wm0a")
    g("ds_write_b64 v11, v[52:53]")
    g("s_waitcnt lgkmcnt(0)")
    g.lab("L_wm0a")
    g("s_barrier")
    g(f"s_cmp_lg_u32 s{sT0}, 0")
    g("s_cbranch_scc1 L_wm1b")
    g("ds_read_b64 v[54:55], v11")
    g(f"s_lshl_b32 s{sT2}, s{sT}, 10")
    g("v_mov_b32 v56, 0x7fc00000")
    g("s_waitcnt lgkmcnt(0)")
    g("v_pk_add_f32 v[52:53], v[52:53], v[54:55]")
    g("v_cmp_eq_u32 vcc, -1, v52")
    g("s_nop 1")
    g("v_cndmask_b32 v52, v52, v56, vcc")
    g("v_cmp_eq_u32 vcc, -1, v53")
    g("s_nop 1")
    g("v_cndmask_b32 v53, v53, v56, vcc")
    g(f"buffer_store_dwordx2 v[52:53], v10, s[{SG}:{SG+3}], s{sT2} offen sc1")
    g.lab("L_wm1b")
    stamp(3)
    g.c("---- transpose the accumulators through LDS (fp32, column-major, swizzled)")
    g("v_and_b32 v9, 7, v3")
    g("v_lshrrev_b32 v10, 3, v3")
    g("v_lshlrev_b32 v10, 2, v10")
    g("v_xor_b32 v9, v9, v10")
    g("v_xor_b32 v9, v9, v8")
    g("v_lshlrev_b32 v9, 4, v9")
    g("v_lshl_add_u32 v9, v3, 8, v9")
    g(f"s_lshl_b32 s{sT2}, s{sWV}, 14")
    g(f"v_add_u32 v9, s{sT2}, v9")
    for mt in range(4):
        for par in range(2):
            x = ((4 * mt) ^ (8 * par)) * 16
            if x:
                g(f"v_xor_b32 v10, {x}, v9")
                a = 10
            else:
                a = 9
            for nt in (par, par + 2):
                r = T(mt, nt)
                g(f"ds_write_b128 v{a}, v[{r}:{r+3}] offset:{nt*4096}")
    g.L.append("@@SEC loader")

    if opts.get("lprio", True):
        g("s_setprio 3")
    g(f"s_sub_u32 s{sT3}, s{sWV}, 4")
    g("v_lshrrev_b32 v3, 3, v2")
    g(f"s_lshl_b32 s{sT0}, s{sT3}, 5")
    g(f"v_add_u32 v3, s{sT0}, v3")
    g("v_lshlrev_b32 v3, 10, v3")
    g("v_lshrrev_b32 v4, 4, v2")
    g("v_bfe_u32 v5, v2, 4, 2")
    g("v_lshlrev_b32 v5, 1, v5")
    g("v_and_b32 v6, 7, v2")
    g("v_xor_b32 v5, v5, v6")
    g("v_lshl_add_u32 v16, v5, 4, v3")
    for j in range(1, 4):
        g(f"v_add_u32 v{16+j}, {j*(8192-1024)}, v16")
    g(f"s_lshl_b32 s{sT0}, s{sT3}, 4")
    g(f"v_add_u32 v3, s{sT0}, v4")
    g("v_lshlrev_b32 v3, 9, v3")
    g("v_lshlrev_b32 v5, 1, v4")
    g("v_and_b32 v6, 15, v2")
    g("v_xor_b32 v5, v5, v6")
    g("v_lshl_add_u32 v3, v5, 4, v3")
    g(f"s_lshl_b32 s{sT0}, s{sQ}, 8")
    g(f"v_add_u32 v20, s{sT0}, v3")
    g("v_add_u32 v21, 1024, v20")
    g("v_xor_b32 v22, 128, v20")
    g("v_add_u32 v23, 3072, v22")
    g("v_add_u32 v22, 2048, v22")
    sLX, sLW, sXc, sWc, sRot = 67, 86, 87, 88, 89
    sPC, sPH, sGC, sGH = 90, 91, 92, 93
    sTP = [68, 69, 70]
    g(f"s_lshl_b32 s{sLX}, s{sT3}, 12")
    g(f"s_add_u32 s{sLW}, s{sLX}, 0x10000")
    g(f"s_lshl_b32 s{sPC}, s{sQ}, 14")
    g(f"s_xor_b32 s{sPH}, s{sPC}, 0x4000")
    g(f"s_lshl_b32 s{sGC}, s{sQ}, 9")
    g(f"s_xor_b32 s{sGH}, s{sGC}, 0x200")
    g(f"s_cmp_eq_u32 s{sQ}, 0")
    for p in range(3):
        g(f"s_cselect_b32 s{sTP[p]}, {TAPS[0][p]*131072}, {TAPS[1][p]*131072}" if TAPS[0][p] * TAPS[1][p] == 0 else
          f"s_cselect_b32 s{sTP[p]}, 1, 2")
    g(f"s_lshl_b32 s{sTP[2]}, s{sTP[2]}, 17")
    g(f"s_lshr_b32 s{sRot}, s{sR}, 1")
    g(f"s_mov_b32 s{sI}, 0")
    if stamps:
        g("s_memrealtime s[72:73]")
    g("s_waitcnt lgkmcnt(0)")
    if stamps:
        g("s_memrealtime s[74:75]")
    srd(SX, 4, 5, 16384000)
    srd(SW, 6, 7, 393216)

    def issue(kind):
        if opts.get("noload"):
            return
        if kind in "CH":
            p = pol(xcpol if kind == "C" else xhpol)
            g(f"s_add_u32 m0, s{sLX}, s{sPC if kind == 'C' else sPH}")
            g(f"s_add_u32 s{sT0}, s{sXc}, s{sGC if kind == 'C' else sGH}")
            for j in range(4):
                g(f"buffer_load_dwordx4 v{16+j}, s[{SX}:{SX+3}], s{sT0} offen offset:{j*1024}{p} lds")
        else:
            pos = int(kind)
            g(f"s_add_u32 m0, s{sLW}, {pos*16384}")
            g(f"s_add_u32 s{sT0}, s{sWc}, s{sTP[pos]}")
            for j in range(4):
                g(f"buffer_load_dwordx4 v{20+j}, s[{SW}:{SW+3}], s{sT0} offen offset:{j*1024} lds")

    W_ = 63 if opts.get("noload") else 12
    g.lab("L_lloop")
    g(f"s_add_u32 s{sT1}, s{sRot}, s{sI}")
    g(f"s_and_b32 s{sT1}, s{sT1}, 3")
    g(f"s_lshl_b32 s{sWc}, s{sT1}, 15")
    g(f"s_lshl_b32 s{sT1}, s{sT1}, 7")
    g(f"s_add_u32 s{sXc}, s{sXB}, s{sT1}")
    G = opts.get("groups", "C0H|1|2").split("|")
    assert "".join(G) == "C0H12" and len(G) == 3
    wv = lambda n: 63 if opts.get("noload") else 4 * n
    for k in G[0]:
        issue(k)
    g(f"s_cmp_eq_u32 s{sI}, 0")
    g("s_cbranch_scc1 L_ls1")
    g(f"s_waitcnt vmcnt({wv(1 + len(G[0]))})")
    g("s_barrier")
    g.lab("L_ls1")
    for k in G[1]:
        issue(k)
    g(f"s_cmp_eq_u32 s{sI}, 0")
    g("s_cbranch_scc1 L_ls2")
    g(f"s_waitcnt vmcnt({wv(len(G[0]) + len(G[1]))})")
    g("s_barrier")
    g.lab("L_ls2")
    for k in G[2]:
        issue(k)
    g(f"s_xor_b32 s{sLX}, s{sLX}, 0x8000")
    g(f"s_xor_b32 s{sLW}, s{sLW}, 0xc000")
    g(f"s_add_u32 s{sI}, s{sI}, 1")
    g(f"s_cmp_lt_u32 s{sI}, 4")
    g(f"s_waitcnt vmcnt({W_})")
    g("s_barrier")
    g("s_cbranch_scc1 L_lloop")
    common_srds()
    if stamps:
        g(f"v_mov_b32 v{VS}, s74")
        g(f"buffer_store_dword v{VS}, v{VS+1}, s[{SST}:{SST+3}], 0 offen")
        g(f"v_mov_b32 v{VS}, s72")
        g(f"buffer_store_dword v{VS}, v{VS+1}, s[{SST}:{SST+3}], 0 offen offset:12")
    gb_loads()
    g(f"s_lshl_b32 s{sT0}, s{sGRP}, 6")
    g(f"v_mov_b32 v24, s{sT0}")
    g(f"buffer_load_dword v5, v24, s[{SD}:{SD+3}], 0 offen sc1")
    g("s_waitcnt vmcnt(7)")
    g("s_barrier")
    g("s_waitcnt vmcnt(3)")
    stamp(1)
    g("s_barrier")
    g.lab("L_ljoin")
    if opts.get("lprio", True) and not opts.get("lkeep"):
        g("s_setprio 0")
    g("s_barrier")
    g.c("wait until every workgroup of the group has armed its slot")
    g(f"s_mov_b32 s{sSPIN}, 0")
    g(f"s_waitcnt vmcnt({1 if (opts.get('tpf', False) and not stamps) else 0})")
    g.lab("L_flagpoll")
    g("v_cmp_eq_u32 vcc, 0, v5")
    g(f"s_add_u32 s{sSPIN}, s{sSPIN}, 1")
    g(f"s_cmp_ge_u32 s{sSPIN}, {SPINMAX}")
    g("s_cbranch_scc1 L_noflagwait")
    g("s_cbranch_vccz L_noflagwait")
    g("s_sleep 16")
    g(f"buffer_load_dword v5, v24, s[{SD}:{SD+3}], 0 offen sc1")
    g("s_waitcnt vmcnt(0)")
    g("s_branch L_flagpoll")
    g.lab("L_noflagwait")
    stamp(2)
    g("s_barrier")

    g("s_branch L_join")
    g.L.append("@@SEC join")
    g.lab("L_join")
    GV = 96
    g("v_and_b32 v4, 7, v2")
    g("v_lshrrev_b32 v3, 3, v2")
    g(f"s_lshl_b32 s{sT0}, s{sWV}, 7")
    g(f"v_lshl_add_u32 v7, v4, 4, s{sT0}")
    g("v_lshl_add_u32 v12, v3, 10, v7")
    g("v_add_u32 v11, 0x14000, v7")
    g("s_waitcnt lgkmcnt(0)")
    g("s_barrier")
    g(f"s_mov_b32 s{sSPIN}, 0")

    def gfirst():
        for k in range(8):
            g(f"s_mov_b32 s{sT1}, {k*8192}")
            g(f"buffer_load_dwordx4 v[{GV+4*k}:{GV+4*k+3}], v12, s[{SG}:{SG+3}], s{sT1} offen{pol(gpol)}")
    gpol = opts.get("gpol", "sc1")
    if not opts.get("glate"):
        gfirst()
    g(f"s_and_b32 s{sT0}, s{sWV}, 3")
    g(f"s_lshr_b32 s{sT1}, s{sWV}, 2")
    g(f"s_lshl_b32 s{sT2}, s{sT1}, 3")
    g(f"v_add_u32 v3, s{sT2}, v3")
    g("v_and_b32 v5, 3, v2")
    g("v_lshlrev_b32 v5, 2, v5")
    g("v_xor_b32 v5, v5, v3")
    g("v_lshlrev_b32 v5, 4, v5")
    g("v_lshl_add_u32 v5, v4, 11, v5")
    g(f"s_lshl_b32 s{sT2}, s{sT0}, 14")
    g(f"v_add_u32 v5, s{sT2}, v5")
    D = 64
    for e in range(8):
        if e:
            g(f"v_xor_b32 v6, {e*16}, v5")
            a = 6
        else:
            a = 5
        g(f"ds_read_b128 v[{D+4*e}:{D+4*e+3}], v{a} offset:{e*256}")
    g(f"s_lshr_b32 s{sT2}, s{sT0}, 1")
    g(f"s_lshl_b32 s{sT2}, s{sT2}, 6")
    g(f"v_lshl_add_u32 v6, v3, 2, s{sT2}")
    g(f"s_and_b32 s{sT2}, s{sT0}, 1")
    g(f"s_lshl_b32 s{sT3}, s{sT2}, 7")
    g(f"v_lshl_add_u32 v7, v4, 4, s{sT3}")
    g("v_mov_b32 v9, 0x40000000")
    for rho in range(4):
        g(f"v_add_u32 v8, {rho}, v6")
        g(f"v_cmp_gt_u32 vcc, s{sLIM}, v8")
        g(f"v_lshl_add_u32 v{13+rho}, v8, 9, v7")
        g("s_nop 0")
        g(f"v_cndmask_b32 v{13+rho}, v9, v{13+rho}, vcc")
    g(f"s_lshl_b32 s{sT3}, s{sT2}, 9")
    g(f"s_add_u32 s{sT3}, s{sT3}, 0x14000")
    g(f"v_lshl_add_u32 v17, v4, 6, s{sT3}")
    c0 = -2.0 * 1.4426950408889634 * 0.7978845608028654
    c1 = c0 * 0.044715
    g(f"v_mov_b32 v28, {f32bits(c1):#x}")
    g(f"v_mov_b32 v29, {f32bits(c0):#x}")
    if opts.get("glate"):
        if int(opts.get("gdelay", 0)):
            g(f"s_sleep {int(opts.get('gdelay', 0))}")
        gfirst()
    g.lab("L_gpoll")
    g(f"s_mov_b32 s{sMASK}, 0")
    g("s_waitcnt vmcnt(0)")
    if opts.get("fastchk", True):
        g(f"v_max3_u32 v3, v{GV}, v{GV+1}, v{GV+2}")
        g(f"v_max3_u32 v8, v{GV+16}, v{GV+17}, v{GV+18}")
        for k in range(3, 15, 2):
            g(f"v_max3_u32 v3, v3, v{GV+k}, v{GV+k+1}")
            g(f"v_max3_u32 v8, v8, v{GV+16+k}, v{GV+17+k}")
        g(f"v_max3_u32 v3, v3, v{GV+15}, v{GV+31}")
        g("v_max_u32 v3, v3, v8")
        g("v_cmp_eq_u32 vcc, -1, v3")
        g("s_cbranch_vccz L_gdone")
    for k in range(8):
        b = GV + 4 * k
        g(f"v_max3_u32 v3, v{b}, v{b+1}, v{b+2}")
        g(f"v_max_u32 v3, v3, v{b+3}")
        g("v_cmp_eq_u32 vcc, -1, v3")
        g("s_cmp_lg_u64 vcc, 0")
        g(f"s_cselect_b32 s{sT0}, {1<<k}, 0")
        g(f"s_or_b32 s{sMASK}, s{sMASK}, s{sT0}")
    g("s_cbranch_scc0 L_gdone")
    g(f"s_add_u32 s{sSPIN}, s{sSPIN}, 1")
    g(f"s_cmp_ge_u32 s{sSPIN}, {SPINMAX}")
    g("s_cbranch_scc1 L_gdone")
    if int(opts.get("gsleep", 0)):
        g(f"s_sleep {int(opts.get('gsleep', 0))}")
    for k in range(8):
        g(f"s_bitcmp1_b32 s{sMASK}, {k}")
        g(f"s_cbranch_scc0 L_gskip{k}")
        g(f"s_mov_b32 s{sT1}, {k*8192}")
        g(f"buffer_load_dwordx4 v[{GV+4*k}:{GV+4*k+3}], v12, s[{SG}:{SG+3}], s{sT1} offen{pol(opts.get('gpol2', gpol))}")
        g.lab(f"L_gskip{k}")
    g("s_branch L_gpoll")
    g.lab("L_gdone")
    stamp(4)
    for step in (16, 8, 4):
        for a in range(GV, GV + step, 2):
            g(f"v_pk_add_f32 v[{a}:{a+1}], v[{a}:{a+1}], v[{a+step}:{a+step+1}]")
    g(f"s_mov_b32 s{sT0}, {f32bits(1.0/7999.0):#x}")
    g(f"s_mov_b32 s{sT1}, {f32bits(1e-5):#x}")
    for i in range(4):
        g(f"v_add_f32_dpp v{GV+4+i}, v{GV+i}, v{GV+i} row_ror:8 row_mask:0xf bank_mask:0xf")
    g("v_lshlrev_b32 v18, 16, v30")
    g("v_and_b32 v19, 0xffff0000, v30")
    for i in range(4):
        g(f"v_mov_b32 v{GV+i}, v{GV+4+i}")
    g("v_lshlrev_b32 v20, 16, v31")
    g("v_and_b32 v21, 0xffff0000, v31")
    for i in range(4):
        g(f"v_permlane16_swap_b32 v{GV+i}, v{GV+4+i}")
    g("s_nop 0")
    for a in (0, 2):
        g(f"v_pk_add_f32 v[{GV+a}:{GV+a+1}], v[{GV+a}:{GV+a+1}], v[{GV+4+a}:{GV+5+a}]")
    for i in range(4):
        g(f"v_mov_b32 v{GV+4+i}, v{GV+i}")
    g("s_nop 1")
    for i in range(4):
        g(f"v_permlane32_swap_b32 v{GV+i}, v{GV+4+i}")
    g("s_nop 0")
    for a in (0, 2):
        g(f"v_pk_add_f32 v[{GV+a}:{GV+a+1}], v[{GV+a}:{GV+a+1}], v[{GV+4+a}:{GV+5+a}]")
    g(f"v_pk_mul_f32 v[{GV}:{GV+1}], v[{GV}:{GV+1}], s[{sT0}:{sT0+1}] op_sel_hi:[1,0]")
    g(f"v_pk_mul_f32 v[{GV+2}:{GV+3}], v[{GV+2}:{GV+3}], s[{sT0}:{sT0+1}] op_sel_hi:[1,0]")
    for op in range(6):
        for cidx in range(2):
            S, Q = GV + 2 * cidx, GV + 2 * cidx + 1
            if op == 0:
                g(f"v_fma_f32 v{Q}, -v{S}, v{S}, v{Q}")
            elif op == 1:
                g(f"v_max_f32 v{Q}, 0, v{Q}")
            elif op == 2:
                g(f"v_add_f32 v{Q}, s{sT1}, v{Q}")
            elif op == 3:
                g(f"v_rsq_f32 v{Q}, v{Q}")
                if cidx == 1:
                    g("s_nop 0")
            elif op == 4:
                g(f"v_mul_f32 v{22+2*cidx}, v{18+cidx}, v{Q}")
            else:
                g(f"v_fma_f32 v{23+2*cidx}, -v{S}, v{22+2*cidx}, v{20+cidx}")
    g("s_mov_b64 exec, 0xff")
    g("ds_write_b128 v11, v[22:25]")
    g("s_mov_b64 exec, -1")
    P = 32
    g("s_waitcnt lgkmcnt(0)")
    g("s_barrier")
    for k in range(4):
        g(f"ds_read_b128 v[{P+4*k}:{P+4*k+3}], v17 offset:{k*16}")
    g("s_waitcnt lgkmcnt(0)")
    stamp(5)
    BC = "op_sel:[0,0,1] op_sel_hi:[1,0,1]"
    U = 96
    for rp in range(2):
        for e in range(8):
            d = D + 4 * e + 2 * rp
            g(f"v_pk_fma_f32 v[{d}:{d+1}], v[{d}:{d+1}], v[{P+2*e}:{P+2*e+1}], v[{P+2*e}:{P+2*e+1}] {BC}")
        for e in range(8):
            d = D + 4 * e + 2 * rp
            u = U + 2 * e
            g(f"v_pk_mul_f32 v[{u}:{u+1}], v[{d}:{d+1}], v[{d}:{d+1}]")
        for e in range(8):
            u = U + 2 * e
            g(f"v_pk_fma_f32 v[{u}:{u+1}], v[{u}:{u+1}], v[28:29], v[28:29] {BC}")
        for e in range(8):
            d = D + 4 * e + 2 * rp
            u = U + 2 * e
            g(f"v_pk_mul_f32 v[{u}:{u+1}], v[{u}:{u+1}], v[{d}:{d+1}]")
        for e in range(16):
            g(f"v_exp_f32 v{U+e}, v{U+e}")
        for e in range(8):
            u = U + 2 * e
            g(f"v_pk_add_f32 v[{u}:{u+1}], v[{u}:{u+1}], 1.0 op_sel_hi:[1,0]")
        for e in range(16):
            g(f"v_rcp_f32 v{U+e}, v{U+e}")
        for e in range(8):
            d = D + 4 * e + 2 * rp
            u = U + 2 * e
            g(f"v_pk_mul_f32 v[{d}:{d+1}], v[{u}:{u+1}], v[{d}:{d+1}]")
        for r2 in range(2):
            rho = 2 * rp + r2
            O = 112 + 4 * rho
            for k in range(4):
                g(f"v_cvt_pk_bf16_f32 v{O+k}, v{D+4*(2*k)+rho}, v{D+4*(2*k+1)+rho}")
            g(f"buffer_store_dwordx4 v[{O}:{O+3}], v{13+rho}, s[{SO}:{SO+3}], s{sOB} offen{pol(opol)}")
    if stamps:
        g("s_waitcnt vmcnt(0)")
        stamp(6)
    if opts.get("dbgt"):
        g("s_waitcnt vmcnt(0)")
        g("s_memrealtime s[80:81]")
        g("s_memtime s[82:83]")
        g("s_waitcnt lgkmcnt(0)")
        g("s_and_b32 s84, s2, 0xf9")
        g("s_cmp_lg_u32 s84, 0")
        g("s_cbranch_scc1 L_end")
        g(f"s_cmp_lg_u32 s{sWV}, 4")
        g("s_cbranch_scc1 L_end")
        g("s_sub_u32 s80, s80, s76")
        g("s_sub_u32 s82, s82, s78")
        g("v_mov_b32 v4, s80")
        g("v_mov_b32 v5, s82")
        g("s_lshl_b32 s84, s2, 2")
        g("s_add_u32 s84, s84, 8")
        g("v_mov_b32 v6, s84")
        g("s_mov_b64 exec, 1")
        g(f"buffer_store_dwordx2 v[4:5], v6, s[{SD}:{SD+3}], 0 offen")
    g.lab("L_end")
    g("s_endpgm")
    g.c("---- the four workgroups without a tile arm the slots of one group each")
    g.lab("L_armer")
    g(f"s_lshl_b32 s{sGRP}, s{sPI}, 1")
    g(f"s_add_u32 s{sGRP}, s{sGRP}, s{sQ}")
    g("v_lshlrev_b32 v3, 4, v0")
    for i in range(4, 8):
        g(f"v_mov_b32 v{i}, -1")
    g("s_waitcnt lgkmcnt(0)")
    srd(SD, 14, 15, 256)
    g(f"s_lshl_b32 s{sT0}, s{sGRP}, 16")
    g(f"s_add_u32 s{SG}, s16, s{sT0}")
    g(f"s_addc_u32 s{SG+1}, s17, 0")
    g(f"s_and_b32 s{SG+1}, s{SG+1}, 0xffff")
    g(f"s_mov_b32 s{SG+2}, {63*1024}")
    g(f"s_mov_b32 s{SG+3}, 0x00020000")
    for k in range(8):
        g(f"s_mov_b32 s{sT1}, {k*8192}")
        g(f"buffer_store_dwordx4 v[4:7], v3, s[{SG}:{SG+3}], s{sT1} offen sc1")
    g("s_waitcnt vmcnt(0)")
    g("s_barrier")
    g("v_cmp_eq_u32 vcc, 0, v0")
    g(f"s_lshl_b32 s{sT0}, s{sGRP}, 6")
    g(f"v_mov_b32 v8, s{sT0}")
    g("v_mov_b32 v9, 1")
    g("s_and_saveexec_b64 s[4:5], vcc")
    g("s_cbranch_execz L_armend")
    g(f"buffer_store_dword v9, v8, s[{SD}:{SD+3}], 0 offen sc1")
    g.lab("L_armend")
    g("s_endpgm")

    out = HEADER + """;
; Strided conv (K=3, s=2) as a GEMM (M=2*7999, N=256, K=768) + per-(batch,channel) normalisation + GELU, one launch.
;  * 252 workgroups own a tile of 127 output rows x 128 channels; waves 0-3 run 16x16x32 bf16 MFMAs out of LDS,
;    waves 4-7 stream x (even/odd row planes) and w into LDS with LDS-DMA, one s_barrier per 64-channel tap stage.
;  * every tile publishes its column sums / sums of squares (fp32) in d_ws; 4 helper workgroups first fill those
;    slots with a sentinel and raise a flag in d_debug, so readers can tell this launch's records from old data.
;  * accumulators are transposed through LDS while the records travel; then scale/shift, GELU(tanh), bf16 stores.
; Generated by gen11.py (own generator script).
"""
    out += "; @launch grid=(256,1,1) block=(512,1,1) lds=163840\n"
    out += '.amdgcn_target "amdgcn-amd-amdhsa--gfx950"\n.text\n'
    out += f".globl {NAME}_kernel\n.p2align 8\n.type {NAME}_kernel,@function\n{NAME}_kernel:\n"
    secs = {"head": []}
    cur = "head"
    for ln in g.L:
        if ln.startswith("@@SEC "):
            cur = ln[6:]
            secs[cur] = []
        else:
            secs[cur].append(ln)
    order = ["head", "loader", "compute", "join"]
    out += "\n".join(ln for k in order for ln in secs[k]) + "\nL_codeend:\n"
    nv = 168 if stamps else 160
    out += f""".section .rodata,"a"
.p2align 6
.amdhsa_kernel {NAME}_kernel
  .amdhsa_next_free_vgpr {nv}
  .amdhsa_next_free_sgpr 96
  .amdhsa_accum_offset {nv}
  .amdhsa_group_segment_fixed_size 0
  .amdhsa_kernarg_size 56
  .amdhsa_user_sgpr_count 2
  .amdhsa_user_sgpr_kernarg_segment_ptr 1
  .amdhsa_system_sgpr_workgroup_id_x 1
  .amdhsa_float_denorm_mode_32 3
.end_amdhsa_kernel
"""
    return out


if __name__ == "__main__":
    opts = {}
    outp = f"cdna_kernels/{NAME}.s"
    for a in sys.argv[1:]:
        if a.startswith("-o="):
            outp = a[3:]
        else:
            k, _, v = a.partition("=")
            if v in ("0", "1") and k not in ("R", "gsleep", "bpos", "pace", "pacemod", "gdelay"):
                v = bool(int(v))
            opts[k] = v
    open(outp, "w").write(build(opts))
    print("wrote", outp)
```
